```python
import torch

def _softmax(x, axis=-1):
    return torch.softmax(x, dim=axis)
def _gelu(x):
    return torch.nn.functional.gelu(x, approximate="tanh")
def _silu(x):
    return torch.nn.functional.silu(x)
def _sigmoid(x):
    return torch.sigmoid(x)
def _layernorm(x, axis=-1, eps=1e-5):
    m = x.mean(dim=axis, keepdim=True)
    v = x.var(dim=axis, keepdim=True, unbiased=False)
    return (x - m) / torch.sqrt(v + eps)
def _scatter_add(tgt, idx, src, axis=0):
    return tgt.clone().index_add_(axis, idx, src)
def _segment_sum(src, seg, n):
    out = torch.zeros((n,) + src.shape[1:], dtype=src.dtype)
    return out.index_add_(0, seg, src)
def _pad(x, pw):
    flat = tuple(v for pair in reversed(pw) for v in pair)
    return torch.nn.functional.pad(x, flat)

kernel_name = 'recurrent_scan__ssm_conv_h3__mixer_s_mlp__prompt'

def setup_inputs():

    _w = (lambda a: (lambda t: t.to(torch.bfloat16) if t.is_floating_point() else t)(torch.as_tensor(a)))
    def _A_setup():
        B, S, D = 1, 2048, 640
        ks = 4
        return {
            "q": _w((lambda *s: torch.randn(*s, dtype=torch.bfloat16) * 0.05)(B, S, D)),
            "k": _w((lambda *s: torch.randn(*s, dtype=torch.bfloat16) * 0.2)(B, S, D)),
            "v": _w((lambda *s: torch.randn(*s, dtype=torch.bfloat16) * 0.2)(B, S, D)),
            "shift_k": _w((lambda *s: torch.randn(*s, dtype=torch.bfloat16) * 0.2)(D, ks) * 0.5),
            "ssm_k": _w((lambda *s: torch.randn(*s, dtype=torch.bfloat16) * 0.2)(D, S) * (1.0 / S ** 0.5)),
            "ssm_D": _w((lambda *s: torch.randn(*s, dtype=torch.bfloat16) * 0.2)(D)),
        }
    _A_in = _A_setup()

    def _B_setup():
        B, S, D, F = 1, 2048, 640, 1728
        return {
            "x":  _w((lambda *s: torch.randn(*s, dtype=torch.bfloat16) * 0.05)(B, S, D)),
            "w1": _w((lambda *s: torch.randn(*s, dtype=torch.bfloat16) * 3.2)(D, D) * (D ** -0.5)),
            "w2": _w((lambda *s: torch.randn(*s, dtype=torch.bfloat16) * 3.2)(D, D) * (D ** -0.5)),
            "w3": _w((lambda *s: torch.randn(*s, dtype=torch.bfloat16) * 3.2)(D, F) * (D ** -0.5)),
            "w4": _w((lambda *s: torch.randn(*s, dtype=torch.bfloat16) * 3.2)(F, D) * (F ** -0.5)),
        }
    _B_in = _B_setup()

    return {
        "A_q": _A_in["q"],
        "A_k": _A_in["k"],
        "A_v": _A_in["v"],
        "A_shift_k": _A_in["shift_k"],
        "A_ssm_k": _A_in["ssm_k"],
        "A_ssm_D": _A_in["ssm_D"],
        "B_x": _B_in["x"],
        "B_w1": _B_in["w1"],
        "B_w2": _B_in["w2"],
        "B_w3": _B_in["w3"],
        "B_w4": _B_in["w4"],
    }

def reference(A_q, A_k, A_v, A_shift_k, A_ssm_k, A_ssm_D, B_x, B_w1, B_w2, B_w3, B_w4):
    def _A_ref(q, k, v, shift_k, ssm_k, ssm_D):
        B, S, D = q.shape
        ks = shift_k.shape[-1]
        k_pad = _pad(k, ((0, 0), (ks - 1, 0), (0, 0)))
        k_shift = torch.zeros_like(k)
        for t in range(ks):
            k_shift = k_shift + k_pad[:, t:t + S, :] * shift_k[:, ks - 1 - t][None, None, :]
        kv = k_shift * v
        L = 2 * S
        kv_pad = _pad(kv, ((0, 0), (0, S), (0, 0)))
        kf_pad = _pad(ssm_k, ((0, 0), (0, S)))
        kv_f = (lambda x, axes=(-2,-1): torch.fft.rfft2(x.float(), dim=axes))(kv_pad[:, None, :, :], axes=(1, 2))
        kf_f = (lambda x, axes=(-2,-1): torch.fft.rfft2(x.float(), dim=axes))(kf_pad[:, None, :], axes=(1, 2))
        kf_f = (lambda x, *d: x.permute(*d))(kf_f, 1, 2, 0)
        y_f = kv_f * kf_f[None, :, :, :]
        y = (lambda x, s, axes=(-2,-1): torch.fft.irfft2(x, s=s, dim=axes).to(torch.bfloat16))(y_f, (1, L), axes=(1, 2))[:, 0, :S, :]
        y = y + kv * ssm_D[None, None, :]
        return q * y

    def _B_ref(x, w1, w2, w3, w4):
        B, S, D = x.shape
        h = _gelu(_layernorm(x, axis=-1) @ w1)
        c = D // 4
        g0 = _pad(h[:, :, 0*c:1*c], ((0, 0), (1, 0), (0, 0)))[:, :S, :]
        g1 = _pad(h[:, :, 1*c:2*c], ((0, 0), (0, 1), (0, 0)))[:, 1:, :]
        g2 = _pad(h[:, :, 2*c:3*c], ((0, 0), (2, 0), (0, 0)))[:, :S, :]
        g3 = _pad(h[:, :, 3*c:   ], ((0, 0), (0, 2), (0, 0)))[:, 2:, :]
        hs = torch.concatenate([g0, g1, g2, g3], axis=-1) @ w2
        x1 = x + hs
        h2 = _gelu(_layernorm(x1, axis=-1) @ w3) @ w4
        return x1 + h2

    x = A_q
    xn = _layernorm(x, axis=-1)
    s = _A_ref(xn, A_k, A_v, A_shift_k, A_ssm_k, A_ssm_D)
    g = _silu(_B_ref(xn, B_w1, B_w2, B_w3, B_w4))
    return x + s * g
```

```python
import re


class Op:
    __slots__ = ("text", "kind", "tok", "opt", "cost")

    def __init__(self, text, kind="i", tok=None, cost=4):
        self.text = text
        self.kind = kind
        self.tok = tok
        self.opt = False
        self.cost = cost


class Tok:
    __slots__ = ("cls", "name")

    def __init__(self, cls, name=""):
        self.cls = cls
        self.name = name


class Stream:
    def __init__(self):
        self.ops = []

    def __call__(self, text, cost=None):
        for line in text.strip().split("\n"):
            line = line.strip()
            if not line or line.startswith(";"):
                continue
            m = line.split()[0]
            if m.endswith(":"):
                self.ops.append(Op(line, "label", cost=0))
            elif m.startswith("buffer_") or m.startswith("global_"):
                self.vm(line)
            elif m.startswith("ds_"):
                self.ds(line)
            else:
                c = cost
                if c is None:
                    c = 8 if m.startswith("v_mfma") or m in TRANS else 4
                self.ops.append(Op(line, "i", cost=c))
        return self

    def vm(self, text):
        t = Tok("vm", text)
        self.ops.append(Op(text, "vm", t))
        return t

    def ds(self, text):
        t = Tok("ds", text)
        self.ops.append(Op(text, "ds", t))
        return t

    def wait(self, *toks):
        flat = []
        for t in toks:
            if t is None:
                continue
            if isinstance(t, (list, tuple)):
                flat.extend(x for x in t if x is not None)
            else:
                flat.append(t)
        self.ops.append(Op("", "wait", tok=flat, cost=0))

    def wait_all(self, vm=True, ds=True):
        self.ops.append(Op("", "waitall", tok=(vm, ds), cost=0))

    def barrier(self):
        self.ops.append(Op("s_barrier", "i"))

    def optbeg(self):
        self.ops.append(Op("", "optbeg", cost=0))

    def optend(self):
        self.ops.append(Op("", "optend", cost=0))

    def comment(self, s):
        self.ops.append(Op("; " + s, "raw", cost=0))

    def extend(self, other):
        self.ops.extend(other.ops if isinstance(other, Stream) else other)

    def groups(self):
        return self.ops


def merge(main, side_groups, start=0, every=64):
    out = []
    acc = 0
    nxt = start
    gi = 0
    for op in main.ops:
        while gi < len(side_groups) and acc >= nxt and op.kind not in ("label",):
            out.extend(side_groups[gi])
            acc += sum(o.cost for o in side_groups[gi])
            gi += 1
            nxt += every
        out.append(op)
        acc += op.cost
    rest = side_groups[gi:]
    s = Stream()
    s.ops = out
    return s, rest


TRANS = {"v_exp_f32", "v_rcp_f32", "v_rsq_f32", "v_log_f32", "v_sqrt_f32", "v_sin_f32", "v_cos_f32"}


def resolve_waits(ops):
    out = []
    q = {"vm": [], "ds": []}
    done = {"vm": 0, "ds": 0}
    depth = 0
    saved = []
    pos = {}
    mx = {"vm": 63, "ds": 15}
    for op in ops:
        if op.kind == "optbeg":
            depth += 1
            saved.append((dict(done), {"vm": len(q["vm"]), "ds": len(q["ds"])}))
            continue
        if op.kind == "optend":
            depth -= 1
            d, lens = saved.pop()
            for c in ("vm", "ds"):
                for i in range(lens[c], len(q[c])):
                    q[c][i] = (q[c][i][0], True, i < done[c])
                done[c] = d[c]
            continue
        if op.kind in ("vm", "ds"):
            c = op.kind
            pos[id(op.tok)] = len(q[c])
            q[c].append((op.tok, False, False))
            out.append(op)
            continue
        if op.kind == "waitall":
            vm, ds = op.tok
            parts = []
            if vm:
                parts.append("vmcnt(0)")
                done["vm"] = len(q["vm"])
            if ds:
                parts.append("lgkmcnt(0)")
                done["ds"] = len(q["ds"])
            out.append(Op("s_waitcnt " + " ".join(parts), "i"))
            continue
        if op.kind == "wait":
            need = {"vm": -1, "ds": -1}
            for t in op.tok:
                p = pos[id(t)]
                if q[t.cls][p][2]:
                    continue
                need[t.cls] = max(need[t.cls], p)
            parts = []
            for c in ("vm", "ds"):
                p = need[c]
                if p < done[c]:
                    continue
                n = sum(1 for i in range(p + 1, len(q[c])) if not q[c][i][1])
                n = min(n, mx[c])
                parts.append(("vmcnt(%d)" if c == "vm" else "lgkmcnt(%d)") % n)
                k = len(q[c])
                cnt = 0
                while k > p + 1 and cnt < n:
                    k -= 1
                    if not q[c][k][1]:
                        cnt += 1
                done[c] = p + 1
            if parts:
                out.append(Op("s_waitcnt " + " ".join(parts), "i"))
            continue
        out.append(op)
    return out


_REG = re.compile(r"(?<![\w.])([vas])(?:\[(\d+):(\d+)\]|(\d+)\b)")


def regs_of(s):
    r = set()
    for m in _REG.finditer(s):
        k = m.group(1)
        if m.group(2) is not None:
            for i in range(int(m.group(2)), int(m.group(3)) + 1):
                r.add((k, i))
        else:
            r.add((k, int(m.group(4))))
    if re.search(r"\bvcc\b", s):
        r.add(("s", "vcc"))
    if re.search(r"\bm0\b", s):
        r.add(("s", "m0"))
    if re.search(r"\bexec(_lo|_hi)?\b", s):
        r.add(("s", "exec"))
    return r


def split_ops(text):
    text = text.split(";")[0].strip()
    parts = text.split(None, 1)
    mn = parts[0]
    rest = parts[1] if len(parts) > 1 else ""
    ops = []
    cur = ""
    d = 0
    for ch in rest:
        if ch == "[":
            d += 1
        if ch == "]":
            d -= 1
        if ch == "," and d == 0:
            ops.append(cur.strip())
            cur = ""
        else:
            cur += ch
    if cur.strip():
        ops.append(cur.strip())
    if ops:
        last = ops[-1].split()
        ops[-1] = last[0]
        mods = " ".join(last[1:])
    else:
        mods = ""
    return mn, ops, mods


class Info:
    pass


def analyze(text):
    mn, ops, mods = split_ops(text)
    I = Info()
    I.mn = mn
    I.w = set()
    I.r = set()
    I.cls = "other"
    I.srcc = set()
    I.ab = set()
    I.sdata = set()
    I.states = 1
    R = [regs_of(o) for o in ops]
    allr = set().union(*R) if R else set()
    if mn == "s_nop":
        I.states = int(ops[0], 0) + 1
        I.cls = "nop"
    elif mn.startswith("v_mfma"):
        I.cls = "mfma"
        I.w = R[0]
        I.ab = R[1] | R[2]
        I.srcc = R[3]
        I.r = I.ab | I.srcc
    elif mn.startswith("v_"):
        I.cls = "valu"
        base = mn.replace("_e32", "").replace("_e64", "").replace("_dpp", "").replace("_sdwa", "")
        I.trans = base in TRANS
        I.dpp = mn.endswith("_dpp") or "quad_perm" in mods or "row_" in mods
        I.dot = base.startswith("v_dot")
        I.perml = base.startswith("v_permlane")
        I.rdlane = base in ("v_readfirstlane_b32", "v_readlane_b32")
        I.w = set(R[0])
        I.r = set().union(*R[1:]) if len(R) > 1 else set()
        if I.perml:
            I.w = R[0] | R[1]
            I.r = R[0] | R[1]
        if base in ("v_fmac_f32", "v_dot2c_f32_bf16", "v_pk_fmac_f16") or I.dpp:
            I.r |= R[0]
        if base.startswith("v_cndmask") and len(ops) == 3:
            I.r.add(("s", "vcc"))
        if base.startswith("v_cmpx"):
            I.w.add(("s", "exec"))
    elif mn.startswith("buffer_") or mn.startswith("global_"):
        I.cls = "vmem"
        lds = " lds" in (" " + mods) or "_lds_" in mn
        if "load" in mn and not lds:
            I.w = R[0]
            I.r = set().union(*R[1:])
        else:
            I.r = allr
            if "store" in mn and ("x4" in mn or "x3" in mn):
                I.sdata = R[0] if mn.startswith("buffer_") else R[1]
        if lds:
            I.r.add(("s", "m0"))
            I.usesm0 = True
    elif mn.startswith("ds_"):
        I.cls = "ds"
        if mn.startswith("ds_read"):
            I.w = R[0]
            I.r = set().union(*R[1:]) if len(R) > 1 else set()
        else:
            I.r = allr
        if "addtid" in mn:
            I.r.add(("s", "m0"))
            I.usesm0 = True
    elif mn.startswith("s_"):
        I.cls = "salu"
        if mn.startswith("s_cmp") or mn.startswith("s_cbranch") or mn in (
            "s_branch", "s_waitcnt", "s_barrier", "s_endpgm", "s_sleep", "s_setprio"):
            I.r = allr
        else:
            I.w = R[0] if R else set()
            I.r = set().union(*R[1:]) if len(R) > 1 else set()
            if "saveexec" in mn:
                I.w = I.w | {("s", "exec")}
    for a in ("trans", "dpp", "dot", "perml", "rdlane", "usesm0"):
        if not hasattr(I, a):
            setattr(I, a, False)
    return I


def isv(x):
    return x[0] in ("v", "a")


def need_states(p, c):
    n = 0
    pv = {x for x in p.w if isv(x)}
    ps = {x for x in p.w if x[0] == "s"}
    if p.cls == "valu":
        if c.cls == "mfma" and pv & c.r:
            n = max(n, 2)
        if c.cls == "valu":
            if p.trans and not c.trans and pv & c.r:
                n = max(n, 1)
            if p.trans and c.trans and pv & c.r:
                n = max(n, 1)
            if c.rdlane and pv & c.r:
                n = max(n, 1)
            if (c.perml or c.dpp) and pv & c.r:
                n = max(n, 2)
            if ps & c.r:
                n = max(n, 4 if c.mn.startswith("v_readlane") or c.mn.startswith("v_writelane") else 2)
            if p.dot and pv & (c.r | c.w):
                if c.mn == p.mn:
                    _, ops, _ = split_ops(c.text)
                    ab = set().union(*[regs_of(o) for o in ops[1:3]])
                    if pv & ab:
                        n = max(n, 3)
                else:
                    n = max(n, 3)
        if p.dot and c.cls in ("vmem", "ds", "mfma") and pv & (c.r | c.w):
            n = max(n, 3)
        if c.cls == "vmem" and ps & c.r:
            n = max(n, 5)
        if ("s", "exec") in p.w and c.cls == "mfma":
            n = max(n, 4)
    if p.cls == "mfma":
        if c.cls == "mfma":
            if pv & c.ab:
                n = max(n, 8)
            if pv & c.srcc and pv != c.srcc:
                n = max(n, 6)
            if pv & c.w and pv != c.srcc:
                n = max(n, 6)
        elif c.cls in ("valu", "vmem", "ds"):
            if pv & (c.r | c.w):
                n = max(n, 8)
        if c.cls == "valu" and p.srcc & c.w:
            n = max(n, 3)
    if p.cls == "vmem" and p.sdata and p.sdata & c.w:
        n = max(n, 2 if c.cls == "valu" else 1)
    if p.cls == "salu" and ("s", "m0") in p.w and c.usesm0:
        n = max(n, 1)
    return n


def pad_hazards(ops, window=10):
    items = []
    for op in ops:
        if op.kind in ("label", "raw"):
            items.append((op, None))
        else:
            I = analyze(op.text)
            I.text = op.text
            items.append((op, I))
    labels = {op.text.rstrip(":"): i for i, (op, I) in enumerate(items) if op.kind == "label"}
    preds = {}
    for i, (op, I) in enumerate(items):
        if I is not None and (I.mn.startswith("s_cbranch") or I.mn == "s_branch"):
            tgt = op.text.split()[1]
            if tgt in labels:
                preds.setdefault(labels[tgt], []).append(i)
    pads = [0] * len(items)

    def back_paths(i, budget):
        res = []

        def rec(j, dist):
            while j >= 0 and dist < budget:
                op, I = items[j]
                if op.kind == "label":
                    for b in preds.get(j, []):
                        rec(b, dist)
                    j -= 1
                    k = j
                    while k >= 0 and items[k][1] is None and items[k][0].kind != "label":
                        k -= 1
                    if k >= 0 and items[k][1] is not None and items[k][1].mn in ("s_branch", "s_endpgm"):
                        return
                    continue
                if I is None:
                    j -= 1
                    continue
                res.append((I, dist))
                dist += I.states + pads[j]
                j -= 1

        rec(i - 1, 0)
        return res

    for _ in range(3):
        changed = False
        for i, (op, I) in enumerate(items):
            if I is None:
                continue
            worst = 0
            for P, dist in back_paths(i, window):
                n = need_states(P, I) - dist
                worst = max(worst, n)
            if worst > pads[i]:
                pads[i] = worst
                changed = True
        if not changed:
            break
    out = []
    npad = 0
    for (op, I), p in zip(items, pads):
        if p > 0:
            npad += 1
            out.append(Op("s_nop %d" % (p - 1), "i"))
        out.append(op)
    return out, npad


def render(ops):
    lines = []
    for op in ops:
        if op.kind == "label":
            lines.append(op.text)
        else:
            lines.append("    " + op.text)
    return "\n".join(lines)


def vr(a, n=1, k="v"):
    return f"{k}{a}" if n == 1 else f"{k}[{a}:{a+n-1}]"


def ar(a, n=1):
    return vr(a, n, "a")
```

```python
import sys, os, struct
sys.path.insert(0, os.path.dirname(os.path.abspath(__file__)))
from asmlib import *

NAME = "recurrent_scan__ssm_conv_h3__mixer_s_mlp__prompt_kernel"

WS_FLAGS = 0
WS_H = 0x10000
WS_ST1 = 0x290000
WS_X1 = 0x2B0000
WS_PS = 0x530000
WS_H3 = 0x550000
WS_KVR = 0xC50000
WS_YT = 0xEE0000
WS_W4P = 0x1160000
WS_STAMP = 0x1390000
WS_SIZE = 0x1400000
FL_F1, FL_F2, FL_F3, FL_FC, FL_FY = 0, 32, 48, 64, 72

LDS_SIZE = 163840
L_X = 0
L_W1E = 81920
L_W1L = 40960
L_KVX = 0
KVX_W = 8320
L_CS1 = 33280
L_KVT = 34560
L_PP = 46080
L_W2 = 61440
L_W3 = 0
L_CS3P = 143360
L_CS3F = 145408
CONV_W = 17920
C_H0, C_H2, C_KVA, C_KVB = 0, 4224, 8448, 13088
L_RB = 73728
L_YT = 143360
L_OUT = 153600

S_X, S_W, S_WS, S_K, S_V, S_M, S_OUT, S_DBG = 4, 8, 12, 16, 20, 24, 28, 32
P_Q, P_K, P_V, P_SK, P_SSMK, P_SSMD, P_W1, P_W2, P_W3, P_W4, P_OUT, P_DBG, P_WS = 36, 38, 40, 42, 44, 46, 50, 52, 54, 56, 58, 60, 62
sW, sRB, sCB, sT0 = 64, 65, 66, 67
sGC = 68
sNL2E, sINV, sEPS, sMASK, sONES = 70, 71, 72, 73, 74
sCB160 = 75
sA, sB, sC, sD = 76, 77, 78, 79
sE, sF, sG, sH = 48, 49, 3, 2
S_STAMP = 80

vLANE, vL16, vT, vL8 = 0, 1, 2, 3
vNAT = 4
vTR = 9
vXT = 12
vX1 = 22
vMR = 32
vONE = 34
vFA = 35
vFD = 36
vQ = 37
vTMP = 38


def srd(reg):
    return f"s[{reg}:{reg+3}]"


def f2u(x):
    return struct.unpack("<I", struct.pack("<f", x))[0]


def grp(text_or_stream):
    s = Stream()
    if isinstance(text_or_stream, str):
        s(text_or_stream)
    else:
        s = text_or_stream
    return s.ops


class Gen:
    def __init__(self, diag=False, stop=None, sc1load="sc1"):
        self.diag = diag
        self.stop = stop
        self.S = Stream()
        self.nstamp = 0
        self.nlabel = 0
        self.ld = sc1load
        self.stamp_names = []

    def label(self, base):
        self.nlabel += 1
        return f"L_{base}_{self.nlabel}"

    def stamp(self, S, name):
        if not self.diag:
            return
        k = self.nstamp
        self.nstamp += 1
        self.stamp_names.append(name)
        S("s_memtime s[90:91]")
        S.wait_all(vm=False, ds=True)
        S(f"v_writelane_b32 v39, s90, {k}")

    def mksrd(self, S, reg, ptr, size):
        S(f"s_mov_b64 s[{reg}:{reg+1}], s[{ptr}:{ptr+1}]")
        S(f"s_mov_b32 s{reg+2}, {size}")
        S(f"s_mov_b32 s{reg+3}, 0x20000")

    def ldsaddr(self, basereg, off):
        k = off // 65536
        return f"v{basereg+k} offset:{off - 65536*k}"

    def dma(self, S, vaddr, sr, soff, m0expr, off=0, flags=""):
        sreg, c = m0expr
        if sreg is None:
            S(f"s_mov_b32 m0, {c}")
        else:
            S(f"s_add_u32 m0, s{sreg}, {c}")
        o = f" offset:{off}" if off else ""
        fl = f" {flags}" if flags else ""
        return S.vm(f"buffer_load_dwordx4 v{vaddr}, {srd(sr)}, {soff} offen{o}{fl} lds")

    def divpat(self, S, dst, j, div, stride, tmp, perm=False, dst2=None):
        magic = (1 << 16) // div + 1
        assert all(((p * magic) >> 16) == p // div for p in range(64 * j, 64 * j + 64))
        a, b, c = tmp, tmp + 1, tmp + 2
        S(f"v_add_u32 v{a}, {64*j}, v{vLANE}")
        S(f"v_mul_u32_u24 v{b}, {magic}, v{a}")
        S(f"v_lshrrev_b32 v{b}, 16, v{b}")
        S(f"v_mul_u32_u24 v{c}, {div}, v{b}")
        S(f"v_sub_u32 v{a}, v{a}, v{c}")
        S(f"v_lshlrev_b32 v{a}, 4, v{a}")
        S(f"v_mul_u32_u24 v{c}, {stride}, v{b}")
        S(f"v_add_u32 v{dst}, v{c}, v{a}")
        if dst2 is not None:
            S(f"v_bfe_u32 v{c}, v{b}, 2, 2")
            S(f"v_lshlrev_b32 v{c}, 3, v{c}")
            S(f"v_and_b32 v{dst2}, 3, v{b}")
            S(f"v_add_u32 v{c}, v{c}, v{dst2}")
            S(f"v_lshrrev_b32 v{b}, 4, v{b}")
            S(f"v_lshl_add_u32 v{c}, v{b}, 2, v{c}")
            S(f"v_mul_u32_u24 v{c}, {stride}, v{c}")
            S(f"v_add_u32 v{dst2}, v{c}, v{a}")

    def qreduce2(self, S, a, b, t):
        S(f"v_permlane16_swap_b32 v{a}, v{b}")
        S(f"v_add_f32 v{a}, v{a}, v{b}")
        S(f"v_mov_b32 v{t}, v{a}")
        S(f"v_permlane32_swap_b32 v{a}, v{t}")
        S(f"v_add_f32 v{a}, v{a}, v{t}")
        S(f"v_mov_b32 v{b}, v{a}")
        S(f"v_permlane16_swap_b32 v{a}, v{b}")

    def gelu_pairs(self, S, pairs, tmp, width=4):
        for i in range(0, len(pairs), width):
            ch = pairs[i:i + width]
            T = [tmp + 2 * k for k in range(len(ch))]
            for (z, d), t in zip(ch, T):
                S(f"v_pk_mul_f32 v[{t}:{t+1}], v[{z}:{z+1}], v[{z}:{z+1}]")
            for (z, d), t in zip(ch, T):
                S(f"v_pk_fma_f32 v[{t}:{t+1}], v[{t}:{t+1}], s[{sGC}:{sGC+1}], s[{sGC}:{sGC+1}] op_sel:[0,0,1] op_sel_hi:[1,0,1]")
            for (z, d), t in zip(ch, T):
                S(f"v_pk_mul_f32 v[{t}:{t+1}], v[{t}:{t+1}], v[{z}:{z+1}]")
            for (z, d), t in zip(ch, T):
                S(f"v_exp_f32 v{t}, v{t}")
                S(f"v_exp_f32 v{t+1}, v{t+1}")
            for (z, d), t in zip(ch, T):
                S(f"v_pk_add_f32 v[{t}:{t+1}], v[{t}:{t+1}], 1.0 op_sel_hi:[1,0]")
            for (z, d), t in zip(ch, T):
                S(f"v_rcp_f32 v{t}, v{t}")
                S(f"v_rcp_f32 v{t+1}, v{t+1}")
            for (z, d), t in zip(ch, T):
                S(f"v_pk_mul_f32 v[{t}:{t+1}], v[{t}:{t+1}], v[{z}:{z+1}]")
            for (z, d), t in zip(ch, T):
                S(f"v_cvt_pk_bf16_f32 v{d}, v{t}, v{t+1}")

    def poll(self, S, vaddr, sr, soff="0", off=0, only_w0=True):
        lp, dn = self.label("poll"), self.label("polld")
        if only_w0:
            S(f"s_cmp_lg_u32 s{sW}, 0")
            S(f"s_cbranch_scc1 {dn}")
        S.optbeg()
        S(f"s_mov_b32 s{sD}, 0")
        S(f"{lp}:")
        o = f" offset:{off}" if off else ""
        S.vm(f"buffer_load_dword v{vFD}, v{vaddr}, {srd(sr)}, {soff} offen{o} sc1")
        S(f"s_add_u32 s{sD}, s{sD}, 1")
        S(f"s_cmp_gt_u32 s{sD}, 400000")
        S(f"s_cbranch_scc1 {dn}")
        S.wait_all(vm=True, ds=False)
        S(f"v_cmp_ne_u32 vcc, 1, v{vFD}")
        S(f"s_cbranch_vccnz {lp}")
        S.optend()
        S(f"{dn}:")

    def flag_store(self, S, line_expr):
        dn = self.label("flagd")
        S(f"s_cmp_lg_u32 s{sW}, 0")
        S(f"s_cbranch_scc1 {dn}")
        S.optbeg()
        S(f"v_mov_b32 v{vFA}, 0")
        S("s_mov_b64 exec, 1")
        S.vm(f"buffer_store_dword v{vONE}, v{vFA}, {srd(S_WS)}, s{line_expr} offen sc1")
        S("s_mov_b64 exec, -1")
        S.optend()
        S(f"{dn}:")

    def prologue(self):
        S = self.S
        S("s_cmp_ge_u32 s2, 256")
        S("s_cbranch_scc1 L_end")
        S("s_load_dwordx16 s[36:51], s[0:1], 0")
        S("s_load_dwordx8 s[52:59], s[0:1], 64")
        S("s_load_dwordx4 s[60:63], s[0:1], 96")
        if self.diag:
            S("s_memrealtime s[88:89]")
            S("v_mov_b32 v39, 0")
        S("s_getpc_b64 s[80:81]")
        S("v_lshlrev_b32 v190, 7, v0")
        self.t_code = S.vm("global_load_dword v191, v190, s[80:81]")
        S("v_lshlrev_b32 v190, 5, v0")
        S("v_add_u32 v190, 0x8000, v190")
        S.vm("global_load_dword v191, v190, s[80:81]")
        S(f"v_lshrrev_b32 v{vTMP}, 6, v0")
        S(f"v_and_b32 v{vLANE}, 63, v0")
        S(f"v_readfirstlane_b32 s{sW}, v{vTMP}")
        S(f"s_and_b32 s{sA}, s2, 7")
        S(f"s_lshr_b32 s{sB}, s2, 3")
        S(f"s_and_b32 s{sCB}, s{sB}, 7")
        S(f"s_lshr_b32 s{sB}, s{sB}, 3")
        S(f"s_lshl_b32 s{sA}, s{sA}, 2")
        S(f"s_add_u32 s{sRB}, s{sA}, s{sB}")
        S(f"v_and_b32 v{vT}, 15, v{vLANE}")
        S(f"v_lshrrev_b32 v{vQ}, 4, v{vLANE}")
        S(f"s_lshr_b32 s{sA}, s{sCB}, 2")
        S(f"s_add_u32 s{sA}, s{sA}, 1")
        S(f"s_sub_u32 s{sB}, 0, s{sA}")
        S(f"s_bitcmp1_b32 s{sCB}, 1")
        S(f"s_cselect_b32 s{sA}, s{sA}, s{sB}")
        S(f"s_lshl_b32 s{sT0}, s{sRB}, 6")
        S(f"s_lshl_b32 s{sB}, s{sW}, 4")
        S(f"s_add_u32 s{sT0}, s{sT0}, s{sB}")
        S(f"s_add_u32 s{sA}, s{sA}, s{sT0}")
        S(f"v_add_u32 v164, s{sA}, v{vQ}")
        S(f"v_mul_i32_i24 v164, 1280, v164")
        S(f"v_xor_b32 v165, v{vT}, v{vQ}")
        S(f"v_lshlrev_b32 v165, 4, v165")
        S(f"v_add_u32 v160, v164, v165")
        for i in range(1, 4):
            S(f"v_xor_b32 v{160+i}, {64*i}, v160")
            S(f"v_add_u32 v{160+i}, {5120*i}, v{160+i}")
        S(f"s_mul_i32 s{sC}, s{sW}, 20480")
        S(f"s_mul_i32 s{sCB160}, s{sCB}, 160")
        S("s_waitcnt lgkmcnt(0)")
        self.stamp(S, "kernarg")
        self.mksrd(S, S_X, P_Q, 2621440)
        self.mksrd(S, S_WS, P_WS, WS_SIZE)
        self.mksrd(S, S_DBG, P_DBG, 256)
        S(f"v_lshlrev_b32 v{vL16}, 4, v{vLANE}")
        skip = self.label("noinit")
        S(f"s_lshl_b32 s{sA}, s2, 2")
        S(f"s_add_u32 s{sA}, s{sA}, s{sW}")
        S(f"s_cmp_lg_u32 s{sA}, 3")
        S(f"s_cselect_b32 s{sG}, 0, 1")
        S(f"s_cbranch_scc1 {skip}")
        S.optbeg()
        for r in range(4):
            S(f"v_mov_b32 v{192+r}, 0")
        self.t_init = []
        for i in range(10):
            S(f"s_mov_b32 s{sA}, {1024*i}")
            self.t_init.append(S.vm(f"buffer_store_dwordx4 v[192:195], v{vL16}, {srd(S_WS)}, s{sA} offen sc1"))
        S.optend()
        S(f"{skip}:")
        self.t_x = {}
        for g in range(5):
            for i in range(4):
                self.t_x[g, i] = self.dma(S, 160 + i, S_X, "0", (sC, L_X + 4096 * g + 1024 * i - 256 * g), off=256 * g)
        self.mksrd(S, S_W, P_W1, 819200)
        for j in range(5):
            self.divpat(S, vNAT + j, j, 10, 1280, 180, dst2=168 + j)
        self.t_w1 = {}
        for st in range(3):
            self.w1_stage(S, st)
        S(f"v_lshlrev_b32 v{vL8}, 3, v{vLANE}")
        S(f"v_add_u32 v{vL8}, 2048, v{vL8}")
        S(f"v_lshrrev_b32 v180, 2, v{vLANE}")
        S(f"v_mul_u32_u24 v180, 160, v180")
        S(f"v_and_b32 v181, 3, v{vLANE}")
        S(f"v_lshl_add_u32 v{vTR}, v181, 3, v180")
        S(f"v_add_u32 v{vTR+1}, 0x10000, v{vTR}")
        S(f"v_add_u32 v{vTR+2}, 0x20000, v{vTR}")
        S(f"v_lshrrev_b32 v180, 2, v{vT}")
        S(f"v_lshlrev_b32 v180, 10, v180")
        S(f"v_and_b32 v181, 3, v{vT}")
        S(f"v_lshl_add_u32 v180, v181, 8, v180")
        S(f"v_add_u32 v180, s{sC}, v180")
        S(f"v_xor_b32 v181, v{vT}, v{vQ}")
        S(f"v_lshl_add_u32 v164, v181, 4, v180")
        for e in range(1, 4):
            S(f"v_xor_b32 v{164+e}, {64*e}, v164")
        C1 = -2.0 * 1.4426950408889634 * 0.7978845608028654
        S(f"s_mov_b32 s{sGC}, {f2u(C1*0.044715):#x}")
        S(f"s_mov_b32 s{sGC+1}, {f2u(C1):#x}")
        S(f"s_mov_b32 s{sNL2E}, {f2u(-1.4426950408889634):#x}")
        S(f"s_mov_b32 s{sINV}, {f2u(1.0/640):#x}")
        S(f"s_mov_b32 s{sEPS}, {f2u(1e-5):#x}")
        S(f"s_mov_b32 s{sMASK}, 0xffff0000")
        S(f"s_mov_b32 s{sONES}, 0x3f803f80")
        S(f"v_mov_b32 v{vONE}, 1")
        for r in range(4):
            S(f"v_mov_b32 v{176+r}, s{sONES}")
        for r in range(8):
            S(f"v_mov_b32 v{180+r}, 0")
        for r in range(20):
            S(f"v_mov_b32 v{140+r}, 0")
        self.mksrd(S, S_K, P_K, 2621440)
        self.mksrd(S, S_V, P_V, 2621440)
        self.mksrd(S, S_M, P_SK, 5120)
        self.mksrd(S, S_OUT, P_OUT, 2621440)
        skip = self.label("noinit2")
        S(f"s_cmp_eq_u32 s{sG}, 0")
        S(f"s_cbranch_scc1 {skip}")
        S.optbeg()
        S.wait(self.t_init)
        S(f"v_mov_b32 v{vFA}, 0")
        S("s_mov_b64 exec, 1")
        S.vm(f"buffer_store_dword v{vONE}, v{vFA}, {srd(S_DBG)}, 0 offen sc1")
        S("s_mov_b64 exec, -1")
        S.optend()
        S(f"{skip}:")

    def w1_slot_base(self, slot):
        return L_W1E + 5120 * slot if slot < 12 else L_W1L + 5120 * (slot - 12)

    def w1_stage(self, S, st):
        S(f"s_add_u32 s{sA}, s{sW}, {4*st}")
        S(f"s_mul_i32 s{sB}, s{sA}, 40960")
        S(f"s_add_u32 s{sB}, s{sB}, s{sCB160}")
        S(f"s_mul_i32 s{sA}, s{sW}, 5120")
        self.t_w1[st] = [self.dma(S, 168 + j, S_W, f"s{sB}", (sA, self.w1_slot_base(4 * st) + 1024 * j)) for j in range(5)]

    def gemm1(self):
        S = self.S
        XF, ACC, CS = 40, 120, 140
        rd = {}
        for g in range(5):
            S.wait([self.t_x[g, i] for i in range(4)])
            for e in range(4):
                s = 4 * g + e
                rd[s] = S.ds(f"ds_read_b128 v[{XF+4*s}:{XF+4*s+3}], v{164+e} offset:{4096*g}")
            if g > 0:
                self.stats1(S, g - 1, rd, XF)
        self.stats1(S, 4, rd, XF)
        self.stamp(S, "x+stats")
        side = []
        for st in (3, 4):
            T = Stream()
            self.w1_stage(T, st)
            ops = T.ops
            idx = [i for i, o in enumerate(ops) if o.kind == "vm"]
            prev = 0
            for i in idx:
                side.append(ops[prev:i + 1])
                prev = i + 1
        side += self.kvx_loads()
        M = Stream()
        WB = lambda s, nu: 20 * (s & 1) + 4 * nu

        def reads(s):
            out = []
            b = self.w1_slot_base(s)
            for nu in range(5):
                for jh in range(2):
                    T = Stream()
                    t = T.ds(f"ds_read_b64_tr_b16 a[{WB(s,nu)+2*jh}:{WB(s,nu)+2*jh+1}], {self.ldsaddr(vTR, b + 2560*jh + 32*nu)}")
                    out.append((T.ops, t, nu))
            return out

        S.wait(self.t_w1[0])
        S.wait_all(vm=False, ds=True)
        S.barrier()
        self.stamp(S, "bar0")
        cur = reads(0)
        for ops, t, nu in cur:
            M.extend(ops)
        for s in range(20):
            nxt = []
            if s + 1 < 20:
                if (s + 1) % 4 == 0:
                    M.wait(self.t_w1[(s + 1) // 4])
                    M.barrier()
                nxt = reads(s + 1)
            k = 0
            for nu in range(5):
                M.wait([t for o, t, n in cur if n == nu])
                c = "0" if s == 0 else f"v[{ACC+4*nu}:{ACC+4*nu+3}]"
                M(f"v_mfma_f32_16x16x32_bf16 v[{ACC+4*nu}:{ACC+4*nu+3}], a[{WB(s,nu)}:{WB(s,nu)+3}], v[{XF+4*s}:{XF+4*s+3}], {c}")
                for ops, t, n in nxt[k:k + 2]:
                    M.extend(ops)
                k += 2
            lab = self.label("cs")
            M(f"s_cmp_lg_u32 s{sW}, {s % 4}")
            M(f"s_cbranch_scc1 {lab}")
            for nu in range(5):
                M(f"v_mfma_f32_16x16x32_bf16 v[{CS+4*nu}:{CS+4*nu+3}], a[{WB(s,nu)}:{WB(s,nu)+3}], v[176:179], v[{CS+4*nu}:{CS+4*nu+3}]")
            M(f"{lab}:")
            cur = nxt
        M, rest = self.merge_safe(M, side, 0, 56)
        assert not rest
        S.extend(M)
        S(f"s_mul_i32 s{sA}, s{sW}, 320")
        S(f"v_lshlrev_b32 v189, 4, v{vQ}")
        S(f"v_add_u32 v188, s{sA}, v189")
        S("s_mov_b32 exec_lo, 0x00010001")
        S("s_mov_b32 exec_hi, 0x00010001")
        for nu in range(5):
            S.ds(f"ds_write_b128 v188, v[{CS+4*nu}:{CS+4*nu+3}] offset:{L_CS1 + 64*nu}")
        S("s_mov_b64 exec, -1")
        S.wait_all(vm=False, ds=True)
        S.barrier()
        self.stamp(S, "g1mfma")
        rdc = {}
        for w in range(4):
            for nu in range(5):
                rdc[w, nu] = S.ds(f"ds_read_b128 v[{XF+20*w+4*nu}:{XF+20*w+4*nu+3}], v189 offset:{L_CS1 + 320*w + 64*nu}")
        E = Stream()
        R = 186
        for p in range(10):
            E(f"v_pk_mul_f32 v[{ACC+2*p}:{ACC+2*p+1}], v[{ACC+2*p}:{ACC+2*p+1}], v[{R}:{R+1}] op_sel_hi:[1,0]")
        E.wait(list(rdc.values()))
        for p in range(10):
            E(f"v_pk_add_f32 v[{XF+2*p}:{XF+2*p+1}], v[{XF+2*p}:{XF+2*p+1}], v[{XF+20+2*p}:{XF+20+2*p+1}]")
        for p in range(10):
            E(f"v_pk_add_f32 v[{XF+40+2*p}:{XF+40+2*p+1}], v[{XF+40+2*p}:{XF+40+2*p+1}], v[{XF+60+2*p}:{XF+60+2*p+1}]")
        for p in range(10):
            E(f"v_pk_add_f32 v[{XF+2*p}:{XF+2*p+1}], v[{XF+2*p}:{XF+2*p+1}], v[{XF+40+2*p}:{XF+40+2*p+1}]")
        for p in range(10):
            E(f"v_pk_fma_f32 v[{ACC+2*p}:{ACC+2*p+1}], v[{XF+2*p}:{XF+2*p+1}], v[{R}:{R+1}], v[{ACC+2*p}:{ACC+2*p+1}] op_sel:[0,1,0] op_sel_hi:[1,1,1]")
        HP = 100
        E(f"s_lshl_b32 s{sE}, s{sRB}, 2")
        E(f"s_add_u32 s{sE}, s{sE}, s{sW}")
        E(f"s_mul_i32 s{sE}, s{sE}, 20480")
        E(f"s_mul_i32 s{sF}, s{sCB}, 2560")
        E(f"s_add_u32 s{sF}, s{sF}, s{sE}")
        E(f"s_add_u32 s{sC}, s{sF}, {WS_H}")
        st = []
        self.gelu_pairs(E, [(ACC + 2 * p, HP + p) for p in range(4)], 80)
        st.append(E.vm(f"buffer_store_dwordx4 v[{HP}:{HP+3}], v{vL16}, {srd(S_WS)}, s{sC} offen sc1"))
        self.gelu_pairs(E, [(ACC + 2 * p, HP + p) for p in range(4, 8)], 80)
        st.append(E.vm(f"buffer_store_dwordx4 v[{HP+4}:{HP+7}], v{vL16}, {srd(S_WS)}, s{sC} offen offset:1024 sc1"))
        self.gelu_pairs(E, [(ACC + 2 * p, HP + p) for p in range(8, 10)], 80)
        st.append(E.vm(f"buffer_store_dwordx2 v[{HP+8}:{HP+9}], v{vL8}, {srd(S_WS)}, s{sC} offen sc1"))
        self.t_hst = st + [self.t_st1]
        self.w2side = self.w2_loads()
        E, self.w2side = self.merge_safe(E, self.w2side, 150, 90)
        S.extend(E)
        self.stamp(S, "g1epi")

    def merge_safe(self, main, side, start, every):
        out = []
        acc = 0
        nxt = start
        gi = 0
        guard = 0
        ops = main.ops
        for i, op in enumerate(ops):
            ok = guard == 0 and op.kind != "label"
            if op.text.startswith("s_cbranch"):
                ok = False
            while ok and gi < len(side) and acc >= nxt:
                out.extend(side[gi])
                acc += sum(o.cost for o in side[gi])
                gi += 1
                nxt += every
            if op.text.startswith("s_cbranch"):
                guard += 1
            if op.kind == "label" and guard:
                guard -= 1
            if op.text.startswith("s_mov_b64 exec") or op.text.startswith("s_mov_b32 exec_lo"):
                guard = guard - 1 if op.text.endswith("-1") and op.text.startswith("s_mov_b64") else guard + 1
            if op.text.startswith("s_cmp") or op.text.startswith("s_bitcmp"):
                out.append(op)
                acc += op.cost
                self._aftercmp = True
                continue
            out.append(op)
            acc += op.cost if op.kind != "label" else 0
        s = Stream()
        s.ops = out
        return s, side[gi:]

    def stats1(self, S, g, rd, XF):
        for e in range(4):
            s = 4 * g + e
            S.wait(rd[s])
            for r in range(4):
                S(f"v_dot2c_f32_bf16 v{180+r}, s{sONES}, v{XF+4*s+r}")
            for r in range(4):
                S(f"v_dot2c_f32_bf16 v{184+r}, v{XF+4*s+r}, v{XF+4*s+r}")
        if g < 4:
            return
        S("v_add_f32 v180, v180, v181\n v_add_f32 v182, v182, v183\n v_add_f32 v184, v184, v185\n v_add_f32 v186, v186, v187")
        S("v_add_f32 v180, v180, v182\n v_add_f32 v181, v184, v186")
        self.qreduce2(S, 180, 181, 182)
        S(f"v_mul_f32 v184, s{sINV}, v180")
        S(f"v_mul_f32 v181, s{sINV}, v181")
        S(f"v_fma_f32 v181, -v184, v184, v181")
        S(f"v_max_f32 v181, 0, v181")
        S(f"v_add_f32 v182, s{sEPS}, v181")
        S(f"v_rsq_f32 v185, v182")
        S(f"v_mul_f32 v181, v181, v185")
        S(f"v_mul_f32 v181, v181, v185")
        S(f"v_add_f32 v181, s{sEPS}, v181")
        S(f"v_rsq_f32 v181, v181")
        S(f"v_mul_f32 v186, v185, v181")
        S(f"v_mul_f32 v187, v184, v186")
        S(f"v_sub_f32 v187, 0, v187")
        S(f"s_lshl_b32 s{sA}, s{sRB}, 3")
        S(f"s_add_u32 s{sA}, s{sA}, s{sCB}")
        S(f"s_lshl_b32 s{sA}, s{sA}, 9")
        S(f"s_lshl_b32 s{sB}, s{sW}, 7")
        S(f"s_add_u32 s{sH}, s{sA}, s{sB}")
        S(f"s_add_u32 s{sA}, s{sH}, {WS_ST1 - 2048}")
        S("s_mov_b64 exec, 0xffff")
        self.t_st1 = S.vm(f"buffer_store_dwordx2 v[184:185], v{vL8}, {srd(S_WS)}, s{sA} offen sc1")
        S("s_mov_b64 exec, -1")

    def kvx_loads(self):
        G = []
        self.t_k, self.t_v, self.t_xt, self.t_sk = [], [], [], []
        T = Stream()
        T(f"s_sub_u32 s{sC}, s{sT0}, 4")
        T(f"s_mul_i32 s{sC}, s{sC}, 1280")
        for j in range(4):
            T(f"v_add_u32 v{160+j}, s{sC}, v{vNAT+j}")
        T(f"s_mul_i32 s{sC}, s{sW}, {KVX_W}")
        G.append(T.ops)
        for j in range(4):
            T = Stream()
            if j == 3:
                T("s_mov_b64 exec, 0xff")
            self.t_k.append(self.dma(T, 160 + j, S_K, f"s{sCB160}", (sC, L_KVX + 1024 * j)))
            if j == 3:
                T("s_mov_b64 exec, -1")
            G.append(T.ops)
        for which, sr, base, lst in (("v", S_V, 3200, self.t_v), ("x", S_X, 5760, self.t_xt)):
            for j in range(3):
                T = Stream()
                if which == "v" and j == 0:
                    T(f"s_mul_i32 s{sD}, s{sT0}, 1280")
                    T(f"s_add_u32 s{sD}, s{sD}, s{sCB160}")
                if j == 2:
                    T("s_mov_b32 exec_hi, 0")
                lst.append(self.dma(T, vNAT + j, sr, f"s{sD}", (sC, L_KVX + base + 1024 * j)))
                if j == 2:
                    T("s_mov_b64 exec, -1")
                G.append(T.ops)
        T = Stream()
        T(f"s_mul_i32 s{sC}, s{sCB}, 640")
        T(f"v_lshlrev_b32 v164, 3, v{vT}")
        for tau in range(5):
            self.t_sk.append(T.vm(f"buffer_load_dwordx2 v[{200+2*tau}:{201+2*tau}], v164, {srd(S_M)}, s{sC} offen offset:{128*tau}"))
        G.append(T.ops)
        return G

    def w2_loads(self):
        G = []
        self.t_w2 = []
        for i in range(5):
            for j in range(5):
                T = Stream()
                if i == 0 and j == 0:
                    self.mksrd(T, S_W, P_W2, 819200)
                if j == 0:
                    T(f"s_mul_i32 s{sA}, s{sW}, 5")
                    T(f"s_add_u32 s{sA}, s{sA}, {i}")
                    T(f"s_mul_i32 s{sB}, s{sA}, 40960")
                    T(f"s_add_u32 s{sB}, s{sB}, s{sCB160}")
                    T(f"s_mul_i32 s{sA}, s{sA}, 5120")
                self.t_w2.append(self.dma(T, vNAT + j, S_W, f"s{sB}", (sA, L_W2 + 1024 * j)))
                G.append(T.ops)
        return G

    def window1(self):
        S = self.S
        E = Stream()
        E(f"v_mov_b32 v{vFA}, 0")
        t_rdy = E.vm(f"buffer_load_dword v199, v{vFA}, {srd(S_DBG)}, 0 offen sc1")
        E(f"s_mul_i32 s{sC}, s{sW}, {KVX_W}")
        E(f"v_add_u32 v160, s{sC}, v{vTR}")
        E(f"v_mul_u32_u24 v161, 160, v{vT}")
        E(f"v_lshl_add_u32 v161, v{vQ}, 3, v161")
        E(f"v_add_u32 v161, s{sC}, v161")
        E(f"v_mul_u32_u24 v162, 144, v{vT}")
        E(f"v_lshlrev_b32 v163, 3, v{vQ}")
        E(f"v_sub_u32 v162, v162, v163")
        E(f"s_lshl_b32 s{sC}, s{sW}, 5")
        E(f"s_sub_u32 s{sC}, {L_KVT + 120}, s{sC}")
        E(f"v_add_u32 v162, s{sC}, v162")
        E.wait(self.t_k, self.t_v, self.t_xt, self.t_sk)
        rd = []
        for tau in range(5):
            b = 40 + 6 * tau
            a = E.ds(f"ds_read_b64_tr_b16 v[{b}:{b+1}], v160 offset:{L_KVX + 32*tau}")
            c = E.ds(f"ds_read_b64_tr_b16 v[{b+2}:{b+3}], v160 offset:{L_KVX + 640 + 32*tau}")
            d = E.ds(f"ds_read_b64_tr_b16 v[{b+4}:{b+5}], v160 offset:{L_KVX + 3200 + 32*tau}")
            rd.append([a, c, d])
        xtr = []
        for tau in range(5):
            xtr.append(E.ds(f"ds_read_b64 v[{vXT+2*tau}:{vXT+2*tau+1}], v161 offset:{L_KVX + 5760 + 32*tau}"))
        for tau in range(5):
            b = 40 + 6 * tau
            K, V, SK, O = 120, 128, 132, 136
            E.wait(rd[tau])
            E(f"v_and_b32 v{K+1}, s{sMASK}, v{b}")
            E(f"v_lshlrev_b32 v{K+2}, 16, v{b+1}")
            E(f"v_and_b32 v{K+3}, s{sMASK}, v{b+1}")
            E(f"v_lshlrev_b32 v{K+4}, 16, v{b+2}")
            E(f"v_and_b32 v{K+5}, s{sMASK}, v{b+2}")
            E(f"v_lshlrev_b32 v{K+6}, 16, v{b+3}")
            E(f"v_and_b32 v{K+7}, s{sMASK}, v{b+3}")
            sk = 200 + 2 * tau
            E(f"v_lshlrev_b32 v{SK}, 16, v{sk}")
            E(f"v_and_b32 v{SK+1}, s{sMASK}, v{sk}")
            E(f"v_lshlrev_b32 v{SK+2}, 16, v{sk+1}")
            E(f"v_and_b32 v{SK+3}, s{sMASK}, v{sk+1}")
            E(f"v_lshlrev_b32 v{V}, 16, v{b+4}")
            E(f"v_and_b32 v{V+1}, s{sMASK}, v{b+4}")
            E(f"v_lshlrev_b32 v{V+2}, 16, v{b+5}")
            E(f"v_and_b32 v{V+3}, s{sMASK}, v{b+5}")
            for r in range(4):
                E(f"v_mul_f32 v{O+r}, v{K+4+r-3}, v{SK+3}")
            for i in (2, 1, 0):
                for r in range(4):
                    E(f"v_fmac_f32 v{O+r}, v{K+4+r-i}, v{SK+i}")
            for r in range(4):
                E(f"v_mul_f32 v{O+r}, v{O+r}, v{V+r}")
            P = 72 + 2 * tau
            E(f"v_cvt_pk_bf16_f32 v{P}, v{O+3}, v{O+2}")
            E(f"v_cvt_pk_bf16_f32 v{P+1}, v{O+1}, v{O}")
            E.ds(f"ds_write_b64 v162, v[{P}:{P+1}] offset:{16*144*tau}")
        E, self.w2side = self.merge_safe(E, self.w2side, 120, 80)
        S.extend(E)
        S.wait(self.t_hst, t_rdy)
        S.wait_all(vm=False, ds=True)
        S.barrier()
        self.stamp(S, "barA1")
        ok = self.label("rdy")
        S(f"v_cmp_ne_u32 vcc, 1, v199")
        S(f"s_cbranch_vccz {ok}")
        S.optbeg()
        S(f"v_mov_b32 v{vFA}, 0")
        self.poll(S, vFA, S_DBG, only_w0=False)
        S.optend()
        S(f"{ok}:")
        S(f"s_lshl_b32 s{sC}, s{sRB}, 7")
        S(f"s_lshl_b32 s{sD}, s{sCB}, 2")
        S(f"s_add_u32 s{sC}, s{sC}, s{sD}")
        self.flag_store(S, sC)
        np_ = self.label("nopp")
        S(f"s_lshl_b32 s{sG}, s{sRB}, 1")
        S(f"s_add_u32 s{sG}, s{sG}, s{sW}")
        S(f"s_cmp_ge_u32 s{sW}, 2")
        S(f"s_cselect_b32 s{sG}, 56, s{sG}")
        S(f"s_cmp_ge_u32 s{sG}, 56")
        S(f"s_cbranch_scc1 {np_}")
        S.optbeg()
        self.mksrd(S, S_M, P_W4, 2211840)
        S(f"s_mul_i32 s{sC}, s{sG}, 4682")
        S(f"s_lshr_b32 s{sC}, s{sC}, 16")
        S(f"s_mul_i32 s{sD}, s{sC}, 14")
        S(f"s_sub_u32 s{sD}, s{sG}, s{sD}")
        S(f"s_mul_i32 s100, s{sD}, 21846")
        S(f"s_lshr_b32 s100, s100, 16")
        S(f"s_mul_i32 s101, s100, 16")
        S(f"s_lshl_b32 s100, s{sD}, 5")
        S(f"s_add_u32 s100, s100, s101")
        S(f"s_add_u32 s101, s100, 16")
        S(f"s_cmp_eq_u32 s{sD}, 12")
        S(f"s_cselect_b32 s100, 96, s100")
        S(f"s_cselect_b32 s101, 208, s101")
        S(f"s_cmp_eq_u32 s{sD}, 13")
        S(f"s_cselect_b32 s100, 320, s100")
        S(f"s_cselect_b32 s101, 320, s101")
        S(f"s_mul_i32 s99, s{sC}, 432")
        S(f"s_add_u32 s100, s100, s99")
        S(f"s_add_u32 s101, s101, s99")
        S(f"s_mul_i32 s100, s100, 1280")
        S(f"s_mul_i32 s101, s101, 1280")
        S(f"s_add_u32 s100, s100, s{sCB160}")
        S(f"s_add_u32 s101, s101, s{sCB160}")
        S(f"s_lshl_b32 s99, s{sCB}, 2")
        S(f"s_add_u32 s99, s99, s{sC}")
        S(f"s_mul_i32 s99, s99, 71680")
        S(f"s_mul_i32 s{sD}, s{sD}, 5120")
        S(f"s_add_u32 s99, s99, s{sD}")
        S(f"s_add_u32 s99, s99, {WS_W4P}")
        S(f"s_mul_i32 s{sC}, s{sW}, 5120")
        tpp = []
        for jh in range(2):
            for j in range(3):
                if j == 2:
                    S("s_mov_b32 exec_hi, 0")
                tpp.append(self.dma(S, vNAT + j, S_M, f"s{100+jh}", (sC, L_PP + 2560 * jh + 1024 * j)))
                if j == 2:
                    S("s_mov_b64 exec, -1")
        S(f"v_add_u32 v163, s{sC}, v{vTR}")
        S.optend()
        S(f"{np_}:")
        S(f"v_lshrrev_b32 v160, 3, v{vLANE}")
        S(f"v_and_b32 v161, 7, v{vLANE}")
        S(f"v_lshlrev_b32 v161, 4, v161")
        S(f"v_mul_u32_u24 v162, 144, v160")
        S(f"v_add_u32 v162, v162, v161")
        S(f"s_mul_i32 s{sC}, s{sW}, {20*144}")
        S(f"v_add_u32 v162, s{sC}, v162")
        rr = [S.ds(f"ds_read_b128 v[{40+4*i}:{43+4*i}], v162 offset:{L_KVT + 8*144*i}") for i in range(3)]
        S(f"v_lshl_add_u32 v160, v160, 12, v161")
        S(f"s_mul_i32 s{sC}, s{sCB}, 80")
        S(f"s_mul_i32 s{sD}, s{sW}, 20")
        S(f"s_add_u32 s{sC}, s{sC}, s{sD}")
        S(f"s_lshl_b32 s{sC}, s{sC}, 12")
        S(f"s_lshl_b32 s{sD}, s{sRB}, 7")
        S(f"s_sub_u32 s{sC}, s{sC}, s{sD}")
        S(f"s_add_u32 s{sC}, s{sC}, {WS_KVR + 3968}")
        self.t_kvst = []
        for i in range(3):
            S.wait(rr[i])
            if i == 2:
                S("s_mov_b32 exec_hi, 0")
            self.t_kvst.append(S.vm(f"buffer_store_dwordx4 v[{40+4*i}:{43+4*i}], v160, {srd(S_WS)}, s{sC} offen sc1"))
            if i == 2:
                S("s_mov_b64 exec, -1")
            else:
                S(f"s_add_u32 s{sC}, s{sC}, {8*4096}")
        for g in self.w2side:
            S.extend(g)
        self.w2side = []
        np2 = self.label("nopp2")
        S(f"s_cmp_ge_u32 s{sG}, 56")
        S(f"s_cbranch_scc1 {np2}")
        S.optbeg()
        S.wait_all(vm=True, ds=False)
        tt = []
        for nu in range(5):
            a = S.ds(f"ds_read_b64_tr_b16 v[{60+4*nu}:{61+4*nu}], v163 offset:{L_PP + 32*nu}")
            b = S.ds(f"ds_read_b64_tr_b16 v[{62+4*nu}:{63+4*nu}], v163 offset:{L_PP + 2560 + 32*nu}")
            tt.append([a, b])
        for nu in range(5):
            S.wait(tt[nu])
            if nu == 4:
                S("s_add_u32 s99, s99, 4096")
            S.vm(f"buffer_store_dwordx4 v[{60+4*nu}:{63+4*nu}], v{vL16}, {srd(S_WS)}, s99 offen offset:{1024*(nu%4)} sc1")
        S.optend()
        S(f"{np2}:")
        S(f"v_and_b32 v{vFA}, 7, v{vLANE}")
        S(f"v_lshlrev_b32 v{vFA}, 2, v{vFA}")
        S(f"s_lshl_b32 s{sC}, s{sRB}, 7")
        S.wait_all(vm=True, ds=True)
        self.stamp(S, "w1jobs")
        self.poll(S, vFA, S_WS, f"s{sC}")
        S.barrier()
        self.stamp(S, "barB1")
        S(f"s_lshl_b32 s{sC}, s{sCB}, 7")
        S(f"s_lshl_b32 s{sD}, s{sRB}, 2")
        S(f"s_add_u32 s{sC}, s{sC}, s{sD}")
        S(f"s_add_u32 s{sC}, s{sC}, {FL_FC*128}")
        self.flag_store(S, sC)

    @staticmethod
    def ksteps():
        out = []
        for P in range(4):
            for e, off in ((0, 0), (0, 1024), (1, 2560), (1, 3584)):
                cbp = 2 * P + e
                f = 0 if off in (0, 2560) else 1
                r0 = 80 * cbp + 32 * f
                out.append(("full", P, off, (r0, r0 + 16)))
            out.append(("half", P, None, (160 * P + 64, 160 * P + 144)))
        return out

    def a_loads(self, reg, soffreg, step):
        kind, P, off, rows = step
        T = Stream()
        if kind == "full":
            t = [T.vm(f"buffer_load_dwordx4 v[{reg}:{reg+3}], v{vL16}, {srd(S_WS)}, s{soffreg} offen offset:{off} {self.ld}")]
        else:
            t = [T.vm(f"buffer_load_dwordx2 v[{reg}:{reg+1}], v{vL8}, {srd(S_WS)}, s{soffreg} offen {self.ld}"),
                 T.vm(f"buffer_load_dwordx2 v[{reg+2}:{reg+3}], v{vL8}, {srd(S_WS)}, s{soffreg} offen offset:2560 {self.ld}")]
        return T.ops, t

    def gemm2(self):
        S = self.S
        AF, ACC = 40, 120
        steps = self.ksteps()
        NB = 8
        WB = lambda s, nu: 20 * (s % NB) + 4 * nu
        for P in range(4):
            S(f"s_add_u32 s{92+P}, s{sE}, {WS_H + 5120*P}")
        loads = []
        ta = {}
        for s, st in enumerate(steps):
            ops, t = self.a_loads(AF + 4 * s, 92 + st[1], st)
            ta[s] = t
            loads.append(ops)
        T = Stream()
        T(f"s_lshl_b32 s{sA}, s{sW}, 4")
        T(f"v_add_u32 v160, s{sA}, v{vT}")
        T(f"v_cmp_eq_u32 vcc, 63, v160")
        T(f"v_lshlrev_b32 v160, 3, v160")
        T(f"v_add_u32 v160, 8, v160")
        T(f"v_mov_b32 v161, {1024 + 62*8}")
        T(f"s_lshl_b32 s{sA}, s{sRB}, 12")
        T(f"s_add_u32 s{sA}, s{sA}, {WS_ST1}")
        T(f"v_cndmask_b32 v160, v160, v161, vcc")
        t_mr = T.vm(f"buffer_load_dwordx2 v[{vMR}:{vMR+1}], v160, {srd(S_WS)}, s{sA} offen sc1")
        loads.append(T.ops)
        rdtok = {}

        def reads(s):
            out = []
            rows = steps[s][3]
            for nu in range(5):
                for jh in range(2):
                    T = Stream()
                    t = T.ds(f"ds_read_b64_tr_b16 a[{WB(s,nu)+2*jh}:{WB(s,nu)+2*jh+1}], {self.ldsaddr(vTR, L_W2 + 160*rows[jh] + 32*nu)}")
                    rdtok.setdefault((s, nu), []).append(t)
                    out.append(T.ops)
            return out

        PRE = 6
        li = 0
        for s in range(PRE):
            for k, ops in enumerate(reads(s)):
                if k % 5 == 0 and li < len(loads):
                    S.extend(loads[li])
                    li += 1
                S.extend(ops)
        for s in range(20):
            nxt = reads(s + PRE) if s + PRE < 20 else []
            if li < len(loads):
                S.extend(loads[li])
                li += 1
            S.wait(ta[s])
            for nu in range(5):
                S.wait(rdtok[s, nu])
                c = "0" if s == 0 else f"v[{ACC+4*nu}:{ACC+4*nu+3}]"
                S(f"v_mfma_f32_16x16x32_bf16 v[{ACC+4*nu}:{ACC+4*nu+3}], a[{WB(s,nu)}:{WB(s,nu)+3}], v[{AF+4*s}:{AF+4*s+3}], {c}")
                for ops in nxt[2 * nu:2 * nu + 2]:
                    S.extend(ops)
        assert li == len(loads)
        S.barrier()
        self.stamp(S, "g2mfma")
        E = Stream()
        XFp = 40
        E.wait(t_mr)
        E(f"v_mul_f32 v{vMR}, v{vMR}, v{vMR+1}")
        E(f"v_sub_f32 v{vMR}, 0, v{vMR}")
        for p in range(10):
            E(f"v_lshlrev_b32 v{XFp+2*p}, 16, v{vXT+p}")
            E(f"v_and_b32 v{XFp+2*p+1}, s{sMASK}, v{vXT+p}")
        for p in range(10):
            E(f"v_pk_fma_f32 v[{ACC+2*p}:{ACC+2*p+1}], v[{XFp+2*p}:{XFp+2*p+1}], v[{vMR}:{vMR+1}], v[{ACC+2*p}:{ACC+2*p+1}] op_sel:[0,1,0] op_sel_hi:[1,1,1]")
        for p in range(10):
            E(f"v_pk_add_f32 v[{ACC+2*p}:{ACC+2*p+1}], v[{ACC+2*p}:{ACC+2*p+1}], v[{vMR}:{vMR+1}] op_sel_hi:[1,0]")
        E(f"s_add_u32 s{sC}, s{sF}, {WS_X1}")
        PK = 100
        for p in range(10):
            E(f"v_cvt_pk_bf16_f32 v{PK+p}, v{ACC+2*p}, v{ACC+2*p+1}")
        st = []
        st.append(E.vm(f"buffer_store_dwordx4 v[{PK}:{PK+3}], v{vL16}, {srd(S_WS)}, s{sC} offen sc1"))
        st.append(E.vm(f"buffer_store_dwordx4 v[{PK+4}:{PK+7}], v{vL16}, {srd(S_WS)}, s{sC} offen offset:1024 sc1"))
        st.append(E.vm(f"buffer_store_dwordx2 v[{PK+8}:{PK+9}], v{vL8}, {srd(S_WS)}, s{sC} offen sc1"))
        for r in range(4):
            E(f"v_mov_b32 v{80+r}, 0")
        for p in range(10):
            E(f"v_dot2c_f32_bf16 v{80+(p&1)}, s{sONES}, v{PK+p}")
            E(f"v_dot2c_f32_bf16 v{82+(p&1)}, v{PK+p}, v{PK+p}")
        for p in range(10):
            E(f"v_mov_b32 v{vX1+p}, v{PK+p}")
        E("v_add_f32 v80, v80, v81\n v_add_f32 v81, v82, v83")
        self.qreduce2(E, 80, 81, 82)
        E(f"s_add_u32 s{sC}, s{sH}, {WS_PS - 2048}")
        E("s_mov_b64 exec, 0xffff")
        st.append(E.vm(f"buffer_store_dwordx2 v[80:81], v{vL8}, {srd(S_WS)}, s{sC} offen sc1"))
        E("s_mov_b64 exec, -1")
        S.extend(E)
        self.stamp(S, "g2epi")
        self.mksrd(S, S_W, P_W3, 2211840)
        for j in range(7):
            self.divpat(S, 160 + j, j, 14, 3456, 180)
        S(f"s_and_b32 s{sA}, s{sRB}, 1")
        S(f"s_lshl_b32 s{sA}, s{sA}, 3")
        S(f"s_add_u32 s96, s{sA}, s{sCB}")
        S(f"s_lshr_b32 s{sA}, s96, 2")
        S(f"s_mul_i32 s{sA}, s{sA}, 27")
        S(f"s_and_b32 s{sB}, s96, 3")
        S(f"s_mul_i32 s{sB}, s{sB}, 7")
        S(f"s_add_u32 s{sA}, s{sA}, s{sB}")
        S(f"s_lshl_b32 s{sA}, s{sA}, 5")
        S(f"s_mul_i32 s{sB}, s{sW}, {5*32*3456}")
        S(f"s_add_u32 s{sB}, s{sB}, s{sA}")
        S(f"s_mul_i32 s{sA}, s{sW}, {5*7168}")
        t_w3 = {}
        G = []
        for i in range(5):
            for j in range(7):
                T = Stream()
                if j == 0 and i > 0:
                    T(f"s_add_u32 s{sB}, s{sB}, {32*3456}")
                t_w3.setdefault(i, []).append(self.dma(T, 160 + j, S_W, f"s{sB}", (sA, L_W3 + 7168 * i + 1024 * j)))
                G.append(T.ops)
        for g in G[:12]:
            S.extend(g)
        S.wait(st)
        S.barrier()
        self.stamp(S, "barA2")
        S(f"s_lshr_b32 s97, s{sRB}, 1")
        S(f"s_lshl_b32 s{sC}, s97, 7")
        S(f"s_lshl_b32 s{sD}, s96, 2")
        S(f"s_add_u32 s98, s{sC}, s{sD}")
        S(f"s_add_u32 s{sC}, s98, {FL_F2*128}")
        self.flag_store(S, sC)
        for g in G[12:]:
            S.extend(g)
        S(f"v_lshrrev_b32 v180, 2, v{vLANE}")
        S(f"v_mul_u32_u24 v180, 224, v180")
        S(f"v_and_b32 v181, 3, v{vLANE}")
        S(f"v_lshl_add_u32 v{vTR}, v181, 3, v180")
        S(f"v_add_u32 v{vTR+1}, 0x10000, v{vTR}")
        S(f"v_add_u32 v{vTR+2}, 0x20000, v{vTR}")
        S(f"v_add_u32 v182, s{sA}, v{vTR}")
        for r in range(4):
            S(f"v_mov_b32 v{176+r}, s{sONES}")
        CS = 120
        for i in range(5):
            S.wait(t_w3[i])
            tk = []
            for tau in range(7):
                b = 28 * (i & 1) + 4 * tau
                tk.append([S.ds(f"ds_read_b64_tr_b16 a[{b+2*jh}:{b+2*jh+1}], v182 offset:{7168*i + 3584*jh + 32*tau}") for jh in range(2)])
            for tau in range(7):
                b = 28 * (i & 1) + 4 * tau
                S.wait(tk[tau])
                c = "0" if i == 0 else f"v[{CS+4*tau}:{CS+4*tau+3}]"
                S(f"v_mfma_f32_16x16x32_bf16 v[{CS+4*tau}:{CS+4*tau+3}], a[{b}:{b+3}], v[176:179], {c}")
        S(f"s_mul_i32 s{sA}, s{sW}, 448")
        S(f"v_lshlrev_b32 v250, 4, v{vQ}")
        S(f"v_add_u32 v250, {L_CS3P}, v250")
        S(f"v_add_u32 v188, s{sA}, v250")
        S("s_mov_b32 exec_lo, 0x00010001")
        S("s_mov_b32 exec_hi, 0x00010001")
        for tau in range(7):
            S.ds(f"ds_write_b128 v188, v[{CS+4*tau}:{CS+4*tau+3}] offset:{64*tau}")
        S("s_mov_b64 exec, -1")
        S(f"v_and_b32 v{vFA}, 15, v{vLANE}")
        S(f"s_lshl_b32 s{sC}, s97, 7")
        S(f"s_add_u32 s{sC}, s{sC}, {FL_F2*128}")
        S(f"v_lshl_add_u32 v{vFA}, v{vFA}, 2, s{sC}")
        S(f"s_lshl_b32 s{sC}, s{sCB}, 7")
        S(f"s_add_u32 s{sC}, s{sC}, {FL_FC*128 - 128}")
        S(f"v_lshl_add_u32 v180, v{vLANE}, 2, s{sC}")
        S(f"v_cmp_lt_u32 vcc, 31, v{vLANE}")
        S(f"v_cndmask_b32 v{vFA}, v{vFA}, v180, vcc")
        S.wait_all(vm=True, ds=True)
        self.stamp(S, "w2jobs")
        self.poll(S, vFA, S_WS)
        S.barrier()
        self.stamp(S, "barB2")

    def w4_reg(self, phi):
        if phi < 64:
            return ("a", 4 * phi)
        if phi == 64:
            return ("v", 232)
        return ("v", 236 + 2 * (phi - 65))

    def w4_loads(self):
        G = []
        self.t_w4 = {}
        for phi in range(70):
            T = Stream()
            if phi % 4 == 0 and phi <= 64:
                if phi == 0:
                    T(f"s_lshl_b32 s99, s{sCB}, 2")
                    T(f"s_add_u32 s99, s99, s{sW}")
                    T(f"s_mul_i32 s99, s99, 71680")
                    T(f"s_add_u32 s99, s99, {WS_W4P}")
                else:
                    T("s_add_u32 s99, s99, 4096")
            if phi == 68:
                T("s_add_u32 s99, s99, 4096")
            k, r = self.w4_reg(phi)
            off = 1024 * (phi % 4)
            if phi <= 64:
                self.t_w4[phi] = T.vm(f"buffer_load_dwordx4 {k}[{r}:{r+3}], v{vL16}, {srd(S_WS)}, s99 offen offset:{off} {self.ld}")
            else:
                self.t_w4[phi] = T.vm(f"buffer_load_dwordx2 {k}[{r}:{r+1}], v{vL16}, {srd(S_WS)}, s99 offen offset:{off} {self.ld}")
            G.append(T.ops)
        return G

    def gemm3(self):
        S = self.S
        RING, NR, ACC, TMP = 40, 18, 184, 240
        steps = self.ksteps()
        AR = lambda s, h: RING + 8 * (s % NR) + 4 * h
        AC = lambda h, tau: ACC + 28 * h + 4 * tau
        WB = lambda s, tau: 200 + 28 * (s & 1) + 4 * tau
        S(f"s_lshl_b32 s{sA}, s97, 3")
        S(f"s_lshl_b32 s{sB}, s{sW}, 1")
        S(f"s_add_u32 s{sG}, s{sA}, s{sB}")
        S(f"s_mul_i32 s{sA}, s{sG}, 20480")
        for P in range(4):
            S(f"s_add_u32 s{84+8+P}, s{sA}, {WS_X1 + 5120*P}")
        ta = {}
        loads = {}
        for s, st in enumerate(steps):
            ops0, t0 = self.a_loads(AR(s, 0), 92 + st[1], st)
            T = Stream()
            if s % 5 == 0:
                T(f"s_add_u32 s100, s{92+st[1]}, 20480")
            ops1, t1 = self.a_loads(AR(s, 1), 100, st)
            ta[s] = t0 + t1
            loads[s] = ops0 + T.ops + ops1
        S.extend(loads[0])
        S.extend(loads[1])
        S(f"s_lshr_b32 s{sA}, s{sG}, 2")
        S(f"s_lshl_b32 s{sA}, s{sA}, 12")
        S(f"s_and_b32 s{sB}, s{sG}, 3")
        S(f"s_lshl_b32 s{sB}, s{sB}, 7")
        S(f"s_add_u32 s{sA}, s{sA}, s{sB}")
        S(f"s_add_u32 s{sA}, s{sA}, {WS_PS}")
        S(f"v_lshlrev_b32 v248, 10, v{vQ}")
        S(f"v_lshl_add_u32 v248, v{vT}, 3, v248")
        tps = []
        for h in range(2):
            for e in range(2):
                tps.append(S.vm(f"buffer_load_dwordx2 v[{TMP+4*h+2*e}:{TMP+4*h+2*e+1}], v248, {srd(S_WS)}, s{sA} offen offset:{512*e + 128*h} sc1"))
        S(f"s_mul_i32 s{sA}, s{sW}, 448")
        S(f"s_add_u32 s{sA}, s{sA}, {L_CS3F - L_CS3P}")
        S(f"v_add_u32 v249, s{sA}, v250")
        t1 = [S.ds(f"ds_read_b128 v[{ACC+28*w+4*tau}:{ACC+28*w+4*tau+3}], v250 offset:{448*w + 64*tau}") for w in range(2) for tau in range(7)]
        for s in range(2, 6):
            S.extend(loads[s])
        S.wait(t1)
        for p in range(14):
            S(f"v_pk_add_f32 v[{ACC+2*p}:{ACC+2*p+1}], v[{ACC+2*p}:{ACC+2*p+1}], v[{ACC+28+2*p}:{ACC+28+2*p+1}]")
        for w in (2, 3):
            t1 = [S.ds(f"ds_read_b128 v[{ACC+28+4*tau}:{ACC+28+4*tau+3}], v250 offset:{448*w + 64*tau}") for tau in range(7)]
            for s in range(6 + 2 * (w - 2), 8 + 2 * (w - 2)):
                S.extend(loads[s])
            S.wait(t1)
            for p in range(14):
                S(f"v_pk_add_f32 v[{ACC+2*p}:{ACC+2*p+1}], v[{ACC+2*p}:{ACC+2*p+1}], v[{ACC+28+2*p}:{ACC+28+2*p+1}]")
        S("s_mov_b32 exec_lo, 0x00010001")
        S("s_mov_b32 exec_hi, 0x00010001")
        twr = [S.ds(f"ds_write_b128 v249, v[{ACC+4*tau}:{ACC+4*tau+3}] offset:{64*tau}") for tau in range(7)]
        S("s_mov_b64 exec, -1")
        S.wait(tps)
        for h in range(2):
            a = TMP + 4 * h
            S(f"v_add_f32 v{a}, v{a}, v{a+2}")
            S(f"v_add_f32 v{a+1}, v{a+1}, v{a+3}")
            self.qreduce2(S, a, a + 1, a + 2)
            S(f"v_mul_f32 v{a+2}, s{sINV}, v{a}")
            S(f"v_mul_f32 v{a+1}, s{sINV}, v{a+1}")
            S(f"v_fma_f32 v{a+1}, -v{a+2}, v{a+2}, v{a+1}")
            S(f"v_max_f32 v{a+1}, 0, v{a+1}")
            S(f"v_add_f32 v{a+1}, s{sEPS}, v{a+1}")
            S(f"v_rsq_f32 v{a}, v{a+1}")
            S(f"v_mul_f32 v{a+1}, v{a}, v{a+2}")
            S(f"v_sub_f32 v{a+1}, 0, v{a+1}")
        S.wait(twr)
        rdtok = {}

        def reads(s):
            out = []
            rows = steps[s][3]
            for tau in range(7):
                for jh in range(2):
                    T = Stream()
                    t = T.ds(f"ds_read_b64_tr_b16 a[{WB(s,tau)+2*jh}:{WB(s,tau)+2*jh+1}], {self.ldsaddr(vTR, L_W3 + 224*rows[jh] + 32*tau)}")
                    rdtok.setdefault((s, tau), []).append(t)
                    out.append(T.ops)
            return out

        for ops in reads(0):
            S.extend(ops)
        self.stamp(S, "g3start")
        w4 = self.w4_loads()
        w4i = 0
        nextload = 10
        tcs = []
        for s in range(20):
            nxt = reads(s + 1) if s + 1 < 20 else []
            if s == 19:
                for tau in range(7):
                    T = Stream()
                    tcs.append(T.ds(f"ds_read_b128 v[{56+4*tau}:{56+4*tau+3}], v249 offset:{64*tau}"))
                    nxt.append(T.ops)
            S.wait(ta[s])
            k = 0
            for tau in range(7):
                S.wait(rdtok[s, tau])
                for h in range(2):
                    c = "0" if s == 0 else f"v[{AC(h,tau)}:{AC(h,tau)+3}]"
                    S(f"v_mfma_f32_16x16x32_bf16 v[{AC(h,tau)}:{AC(h,tau)+3}], a[{WB(s,tau)}:{WB(s,tau)+3}], v[{AR(s,h)}:{AR(s,h)+3}], {c}")
                    if k < len(nxt):
                        S.extend(nxt[k])
                    k += 1
                    if k in (3, 10) and nextload < 20 and (nextload < NR or nextload - NR < s):
                        S.extend(loads[nextload])
                        nextload += 1
                    elif nextload >= 20 and k in (2, 5, 8, 12) and w4i < 50:
                        S.extend(w4[w4i])
                        w4i += 1
        assert nextload == 20
        S.barrier()
        self.stamp(S, "g3mfma")
        side = w4[w4i:50]
        conv_side = self.conv_setup()
        E = Stream()
        E(f"s_lshl_b32 s{sA}, s{sG}, 4")
        E(f"s_add_u32 s{sA}, s{sA}, s96")
        E(f"s_mul_i32 s100, s{sA}, 3584")
        E(f"s_add_u32 s100, s100, {WS_H3}")
        E(f"s_add_u32 s101, s100, {16*3584}")
        E.wait(tcs)
        st = []
        PK = 88
        for h in range(2):
            R = TMP + 4 * h
            for p in range(14):
                a = AC(h, 0) + 2 * p
                E(f"v_pk_mul_f32 v[{a}:{a+1}], v[{a}:{a+1}], v[{R}:{R+1}] op_sel_hi:[1,0]")
            for p in range(14):
                a = AC(h, 0) + 2 * p
                E(f"v_pk_fma_f32 v[{a}:{a+1}], v[{56+2*p}:{57+2*p}], v[{R}:{R+1}], v[{a}:{a+1}] op_sel:[0,1,0] op_sel_hi:[1,1,1]")
            pk = PK + 16 * h
            for f in range(3):
                self.gelu_pairs(E, [(AC(h, 0) + 8 * f + 2 * p, pk + 4 * f + p) for p in range(4)], 40)
                st.append(E.vm(f"buffer_store_dwordx4 v[{pk+4*f}:{pk+4*f+3}], v{vL16}, {srd(S_WS)}, s{100+h} offen offset:{1024*f} sc1"))
            self.gelu_pairs(E, [(AC(h, 0) + 24 + 2 * p, pk + 12 + p) for p in range(2)], 40)
            st.append(E.vm(f"buffer_store_dwordx2 v[{pk+12}:{pk+13}], v{vL8}, {srd(S_WS)}, s{100+h} offen offset:1024 sc1"))
        E, rest = self.merge_safe(E, conv_side + side, 0, 70)
        S.extend(E)
        self.stamp(S, "g3epi")
        rest = rest + w4[50:]
        for g in rest[:6]:
            S.extend(g)
        S.wait(st)
        S.barrier()
        self.stamp(S, "barA3")
        S(f"s_add_u32 s{sC}, s98, {FL_F3*128}")
        self.flag_store(S, sC)
        for g in rest[6:]:
            S.extend(g)

    def conv_setup(self):
        G = []
        self.t_cv = []
        CV = 120
        T = Stream()
        T(f"s_min_u32 s{sA}, s{sRB}, 19")
        T(f"s_lshl_b32 s{sA}, s{sA}, 2")
        T(f"s_add_u32 s{sA}, s{sA}, s{sW}")
        T(f"s_mul_i32 s{sB}, s{sCB}, 80")
        T(f"s_add_u32 s{sA}, s{sA}, s{sB}")
        T(f"s_lshl_b32 s92, s{sA}, 12")
        T(f"s_lshl_b32 s93, s{sA}, 1")
        T(f"s_add_u32 s94, s92, {WS_KVR}")
        T(f"s_mul_i32 s95, s{sW}, {CONV_W}")
        self.mksrd(T, S_M, P_SSMK, 2621440)
        self.mksrd(T, S_K, P_SSMD, 1280)
        T(f"v_add_u32 v{CV}, 4, v{vL16}")
        T(f"v_add_u32 v{CV+1}, 2, v{vL16}")
        T(f"v_mov_b32 v{CV+2}, 0")
        G.append(T.ops)

        def guarded(fn):
            T = Stream()
            lab = self.label("ncv")
            T(f"s_cmp_ge_u32 s{sRB}, 20")
            T(f"s_cbranch_scc1 {lab}")
            T.optbeg()
            fn(T)
            T.optend()
            T(f"{lab}:")
            G.append(T.ops)

        def small(T):
            self.t_cv.append(T.vm(f"buffer_load_dword v{CV+4}, v{CV+2}, {srd(S_M)}, s92 offen"))
            self.t_cv.append(T.vm(f"buffer_load_ushort v{CV+5}, v{CV+2}, {srd(S_K)}, s93 offen"))
        guarded(small)
        for i in range(0, 4, 2):
            for (va, sr, so, dst, fl) in ((vL16, S_M, 92, C_H0 + 64, ""), (CV, S_M, 92, C_H2 + 64, ""),
                                          (vL16, S_WS, 94, C_KVA, "sc1"), (CV + 1, S_WS, 94, C_KVB, "sc1")):
                def f(T, va=va, sr=sr, so=so, dst=dst, fl=fl, i=i):
                    self.t_cv.append(self.dma(T, va, sr, f"s{so}", (95, dst), off=1024 * i, flags=fl))
                    self.t_cv.append(T.vm(f"buffer_load_dwordx4 v{va}, {srd(sr)}, s{so} offen offset:{1024*(i+1)} {fl} lds"))
                guarded(f)
        return G

    def conv(self):
        S = self.S
        CV = 120
        ACC, KVB, HB = 40, 72, 136
        skip = self.label("noconv")
        S(f"s_cmp_ge_u32 s{sRB}, 20")
        S(f"s_cbranch_scc1 {skip}")
        S.optbeg()
        A1, A2, vH, vKV = 152, 153, 154, 155
        for r in range(4):
            S(f"v_mov_b32 v{156+r}, 0")
        S(f"v_and_b32 v{A1}, 31, v{vLANE}")
        S(f"v_lshlrev_b32 v{A1}, 4, v{A1}")
        S(f"v_lshrrev_b32 v{A2}, 5, v{vLANE}")
        S(f"v_mul_u32_u24 v{A2}, {C_KVB - C_KVA}, v{A2}")
        S(f"v_add3_u32 v{A1}, v{A1}, v{A2}, s95")
        S.ds(f"ds_write_b128 v{A1}, v[156:159] offset:{C_KVA + 4096}")
        S(f"v_and_b32 v{A1}, 3, v{vLANE}")
        S(f"v_lshlrev_b32 v{A1}, 4, v{A1}")
        S(f"v_bfe_u32 v{A2}, v{vLANE}, 2, 1")
        S(f"v_mul_u32_u24 v{A2}, {C_H2 - C_H0}, v{A2}")
        S(f"v_add3_u32 v{A1}, v{A1}, v{A2}, s95")
        S("s_mov_b64 exec, 0xff")
        S.ds(f"ds_write_b128 v{A1}, v[156:159] offset:{C_H0}")
        S("s_mov_b64 exec, -1")
        S(f"v_and_b32 v{A1}, 1, v{vT}")
        S(f"v_cmp_eq_u32 vcc, 1, v{A1}")
        S(f"v_lshlrev_b32 v{vH}, 2, v{vT}")
        S(f"v_lshl_add_u32 v{vH}, v{vQ}, 4, v{vH}")
        S(f"v_mov_b32 v{A1}, {C_H2}")
        S(f"v_mov_b32 v{A2}, {C_H0 + 4}")
        S(f"v_cndmask_b32 v{A1}, v{A1}, v{A2}, vcc")
        S(f"v_add3_u32 v{vH}, v{vH}, v{A1}, s95")
        S(f"v_mov_b32 v{A1}, {C_KVB + 448}")
        S(f"v_mov_b32 v{A2}, {C_KVA + 448}")
        S(f"v_cndmask_b32 v{A1}, v{A1}, v{A2}, vcc")
        S(f"v_lshrrev_b32 v{A2}, 1, v{vT}")
        S(f"v_lshlrev_b32 v{A2}, 6, v{A2}")
        S(f"v_sub_u32 v{A1}, v{A1}, v{A2}")
        S(f"v_lshlrev_b32 v{A2}, 4, v{vQ}")
        S(f"v_add3_u32 v{vKV}, v{A1}, v{A2}, s95")
        S.wait(self.t_cv)
        S(f"v_lshlrev_b32 v{CV+6}, 16, v{CV+4}")
        S(f"v_lshlrev_b32 v{CV+5}, 16, v{CV+5}")
        S(f"v_add_f32 v{CV+6}, v{CV+6}, v{CV+5}")
        S(f"v_and_b32 v{CV+7}, s{sMASK}, v{CV+4}")
        S(f"v_cvt_pk_bf16_f32 v{CV+6}, v{CV+6}, v{CV+7}")
        S(f"v_mov_b32 v{A1}, s95")
        S("s_mov_b64 exec, 1")
        S.ds(f"ds_write_b32 v{A1}, v{CV+6} offset:{C_H0 + 64}")
        S.ds(f"ds_write_b32 v{A1}, v{CV+6} offset:{C_H2 + 60}")
        S.ds(f"ds_write_b16 v{A1}, v156 offset:{C_KVB + 4094}")
        S("s_mov_b64 exec, -1")
        self.stamp(S, "cvready")
        KV = lambda u, b: KVB + 32 * (u & 1) + 4 * b
        HH = lambda pi, e: HB + 8 * (pi & 1) + 4 * e
        tkv, th = {}, {}

        def kvreads(u):
            out = []
            for b in range(8):
                T = Stream()
                tkv[u, b] = T.ds(f"ds_read_b128 v[{KV(u,b)}:{KV(u,b)+3}], v{vKV} offset:{3584 - 512*b + 64*u}")
                out.append(T.ops)
            return out

        def hreads(pi):
            u, pr = divmod(pi, 4)
            out = []
            for e, a in ((0, pr), (1, 7 - pr)):
                for jh in range(2):
                    T = Stream()
                    th.setdefault((pi, e), []).append(
                        T.ds(f"ds_read_b64 v[{HH(pi,e)+2*jh}:{HH(pi,e)+2*jh+1}], v{vH} offset:{64*u + 512*a + 8*jh}"))
                    out.append(T.ops)
            return out

        for ops in hreads(0) + kvreads(0):
            S.extend(ops)
        first = set()
        for u in range(8):
            kvn = kvreads(u + 1) if u < 7 else []
            for pr in range(4):
                pi = 4 * u + pr
                side = (hreads(pi + 1) if pi < 31 else []) + kvn[2 * pr:2 * pr + 2]
                k = 0
                for e, a in ((0, pr), (1, 7 - pr)):
                    S.wait(th[pi, e])
                    for b in range(8 - a):
                        m = a + b
                        S.wait(tkv[u, b])
                        c = f"v[{ACC+4*m}:{ACC+4*m+3}]" if m in first else "0"
                        first.add(m)
                        S(f"v_mfma_f32_16x16x32_bf16 v[{ACC+4*m}:{ACC+4*m+3}], v[{KV(u,b)}:{KV(u,b)+3}], v[{HH(pi,e)}:{HH(pi,e)+3}], {c}")
                        if k < len(side):
                            S.extend(side[k])
                        k += 1
        self.stamp(S, "cvmfma")
        S("s_mov_b32 m0, s95")
        for m in range(8):
            for dw in range(2):
                S(f"v_cvt_pk_bf16_f32 v{KVB+2*m+dw}, v{ACC+4*m+2*dw}, v{ACC+4*m+2*dw+1}")
        for r in range(16):
            S.ds(f"ds_write_addtid_b32 v{KVB+r} offset:{256*r}")
        S(f"v_add_u32 v{A1}, s95, v{vL16}")
        rr = [S.ds(f"ds_read_b128 v[{KVB+16+4*k}:{KVB+19+4*k}], v{A1} offset:{1024*k}") for k in range(4)]
        S(f"v_lshrrev_b32 v{A2}, 5, v{vLANE}")
        S(f"v_lshlrev_b32 v{A2}, 9, v{A2}")
        S(f"v_bfe_u32 v{vH}, v{vLANE}, 2, 2")
        S(f"v_lshl_add_u32 v{A2}, v{vH}, 7, v{A2}")
        S(f"v_bfe_u32 v{vH}, v{vLANE}, 4, 1")
        S(f"v_lshl_add_u32 v{A2}, v{vH}, 6, v{A2}")
        S(f"v_and_b32 v{vH}, 3, v{vLANE}")
        S(f"v_lshl_add_u32 v{A2}, v{vH}, 4, v{A2}")
        S(f"s_add_u32 s94, s92, {WS_YT}")
        for k in range(4):
            S.wait(rr[k])
            S.vm(f"buffer_store_dwordx4 v[{KVB+16+4*k}:{KVB+19+4*k}], v{A2}, {srd(S_WS)}, s94 offen offset:{1024*k} sc1")
        S.optend()
        S(f"{skip}:")
        S(f"v_and_b32 v{vFA}, 15, v{vLANE}")
        S(f"v_lshlrev_b32 v{vFA}, 2, v{vFA}")
        S(f"s_lshl_b32 s{sC}, s97, 7")
        S(f"s_add_u32 s{sC}, s{sC}, {FL_F3*128}")
        S.wait_all(vm=True, ds=True)
        self.stamp(S, "cvdone")
        self.poll(S, vFA, S_WS, f"s{sC}")
        S.barrier()
        self.stamp(S, "barB3")
        noy = self.label("noy")
        S(f"s_cmp_ge_u32 s{sRB}, 20")
        S(f"s_cbranch_scc1 {noy}")
        S.optbeg()
        S(f"s_lshl_b32 s{sC}, s{sCB}, 7")
        S(f"s_lshl_b32 s{sD}, s{sRB}, 2")
        S(f"s_add_u32 s{sC}, s{sC}, s{sD}")
        S(f"s_add_u32 s{sC}, s{sC}, {FL_FY*128}")
        self.flag_store(S, sC)
        S.optend()
        S(f"{noy}:")

    def gemm4(self):
        S = self.S
        ACC, RING, NS = 40, 120, 28
        AC = lambda k, nu: ACC + 20 * k + 4 * nu
        for k in range(4):
            S(f"s_add_u32 s{sA}, s{sW}, {k}")
            S(f"s_and_b32 s{sA}, s{sA}, 3")
            S(f"s_lshl_b32 s{sB}, s{sRB}, 2")
            S(f"s_add_u32 s{sA}, s{sA}, s{sB}")
            S(f"s_lshl_b32 s{sA}, s{sA}, 2")
            S(f"s_add_u32 s{sA}, s{sA}, s{sW}")
            S(f"s_mul_i32 s{sA}, s{sA}, {4*3584}")
            S(f"s_add_u32 s{92+k}, s{sA}, {WS_H3}")
        TAIL = 3
        order = [(s, k) for s in range(14 - TAIL) for k in range(4)]
        for k in (1, 2, 3, 0):
            order += [(s, k) for s in range(14 - TAIL, 14)]
        slot = {sk: i % NS for i, sk in enumerate(order)}
        AR = lambda s, k: RING + 4 * slot[s, k]
        ta = {}

        def load(s, k):
            T = Stream()
            r = AR(s, k)
            if s < 12:
                b, f = divmod(s, 3)
                T(f"s_add_u32 s{sA}, s{92+k}, {3584*b}")
                ta[s, k] = [T.vm(f"buffer_load_dwordx4 v[{r}:{r+3}], v{vL16}, {srd(S_WS)}, s{sA} offen offset:{1024*f} {self.ld}")]
            elif s == 12:
                T(f"s_add_u32 s{sA}, s{92+k}, 3584")
                ta[s, k] = [T.vm(f"buffer_load_dwordx2 v[{r}:{r+1}], v{vL8}, {srd(S_WS)}, s{92+k} offen offset:1024 {self.ld}"),
                            T.vm(f"buffer_load_dwordx2 v[{r+2}:{r+3}], v{vL8}, {srd(S_WS)}, s{sA} offen offset:1024 {self.ld}")]
            else:
                T(f"s_add_u32 s{sA}, s{92+k}, {2*3584}")
                ta[s, k] = [T.vm(f"buffer_load_dwordx2 v[{r}:{r+1}], v{vL8}, {srd(S_WS)}, s{sA} offen offset:1024 {self.ld}")]
            return T.ops

        PRE = 20
        li = 0
        for i in range(PRE):
            S.extend(load(*order[li]))
            li += 1
        S(f"s_mul_i32 s{sB}, s{sW}, 15360")
        S(f"s_add_u32 s{sB}, s{sB}, {L_RB}")
        S(f"v_add_u32 v247, s{sB}, v{vL16}")
        for k in range(1, 4):
            S(f"s_add_u32 s{sA}, s{sW}, {k}")
            S(f"s_and_b32 s{sA}, s{sA}, 3")
            S(f"s_mul_i32 s{sA}, s{sA}, 15360")
            S(f"s_add_u32 s{sA}, s{sA}, {L_RB + 5120*(k-1)}")
            S(f"v_add_u32 v{247+k}, s{sA}, v{vL16}")
        S(f"v_min_u32 v{vFA}, 19, v{vLANE}")
        S(f"v_lshlrev_b32 v{vFA}, 2, v{vFA}")
        S(f"s_lshl_b32 s100, s{sCB}, 7")
        S(f"s_add_u32 s100, s100, {FL_FY*128}")
        S(f"v_lshrrev_b32 v251, 3, v{vLANE}")
        S(f"v_and_b32 v252, 7, v{vLANE}")
        S(f"v_lshlrev_b32 v252, 4, v252")
        S(f"v_lshl_add_u32 v251, v251, 12, v252")
        S(f"s_mul_i32 s101, s{sCB}, 80")
        S(f"s_mul_i32 s{sB}, s{sW}, 20")
        S(f"s_add_u32 s101, s101, s{sB}")
        S(f"s_lshl_b32 s101, s101, 12")
        S(f"s_lshl_b32 s{sB}, s{sRB}, 7")
        S(f"s_add_u32 s101, s101, s{sB}")
        S(f"s_add_u32 s101, s101, {WS_YT}")
        S(f"s_mul_i32 s99, s{sW}, 2560")
        first = set()
        t_fy = None
        t_y = []
        wr = []
        FYI, FYC = 20, 30
        for i, (s, k) in enumerate(order):
            if i == FYI:
                t_fy = S.vm(f"buffer_load_dword v253, v{vFA}, {srd(S_WS)}, s100 offen sc1")
            if i == FYC:
                S.wait(t_fy)
                ok = self.label("fyok")
                S("v_cmp_ne_u32 vcc, 1, v253")
                S(f"s_cbranch_vccz {ok}")
                S.optbeg()
                self.poll(S, vFA, S_WS, "s100", only_w0=False)
                S.optend()
                S(f"{ok}:")
                for j in range(3):
                    if j == 2:
                        S("s_mov_b32 exec_hi, 0")
                    t_y.append(self.dma(S, 251, S_WS, "s101", (99, L_YT + 1024 * j), flags="sc1"))
                    if j == 2:
                        S("s_mov_b64 exec, -1")
                    else:
                        S(f"s_add_u32 s101, s101, {8*4096}")
            S.wait(ta[s, k])
            for nu in range(5):
                phi = 5 * s + nu
                S.wait(self.t_w4[phi])
                kk, r = self.w4_reg(phi)
                c = f"v[{AC(k,nu)}:{AC(k,nu)+3}]" if (k, nu) in first else "0"
                first.add((k, nu))
                if s < 13:
                    S(f"v_mfma_f32_16x16x32_bf16 v[{AC(k,nu)}:{AC(k,nu)+3}], {kk}[{r}:{r+3}], v[{AR(s,k)}:{AR(s,k)+3}], {c}")
                else:
                    S(f"v_mfma_f32_16x16x16_bf16 v[{AC(k,nu)}:{AC(k,nu)+3}], {kk}[{r}:{r+1}], v[{AR(s,k)}:{AR(s,k)+1}], {c}")
                if nu == 1 and li < len(order) and li - i <= NS - 1:
                    S.extend(load(*order[li]))
                    li += 1
                if wr and nu in (2, 4) and s >= 14 - TAIL:
                    S.extend(wr.pop(0))
            if s == 13 and k != 0:
                for nu in range(5):
                    T = Stream()
                    T.ds(f"ds_write_b128 v{247+k}, v[{AC(k,nu)}:{AC(k,nu)+3}] offset:{1024*nu}")
                    wr.append(T.ops)
        assert li == len(order)
        for g in wr:
            S.extend(g)
        self.stamp(S, "g4mfma")
        S.wait(t_y)
        S.wait_all(vm=False, ds=True)
        S.barrier()
        rd = {}
        for j in range(3):
            for nu in range(5):
                rd[j, nu] = S.ds(f"ds_read_b128 v[{RING+20*j+4*nu}:{RING+20*j+4*nu+3}], v247 offset:{5120*j + 1024*nu}")
        Y, XU, X1U, U = 60, 180, 200, 70
        S(f"v_lshrrev_b32 v248, 2, v{vLANE}")
        S(f"v_lshlrev_b32 v248, 7, v248")
        S(f"v_and_b32 v249, 3, v{vLANE}")
        S(f"v_lshl_add_u32 v248, v249, 3, v248")
        S(f"s_lshl_b32 s{sA}, s{sW}, 5")
        S(f"s_add_u32 s{sA}, s{sA}, {L_YT}")
        S(f"v_add_u32 v248, s{sA}, v248")
        ty = [S.ds(f"ds_read_b64_tr_b16 v[{Y+2*tau}:{Y+2*tau+1}], v248 offset:{2048*tau}") for tau in range(5)]
        for p in range(10):
            S(f"v_lshlrev_b32 v{XU+2*p}, 16, v{vXT+p}")
            S(f"v_and_b32 v{XU+2*p+1}, s{sMASK}, v{vXT+p}")
            S(f"v_lshlrev_b32 v{X1U+2*p}, 16, v{vX1+p}")
            S(f"v_and_b32 v{X1U+2*p+1}, s{sMASK}, v{vX1+p}")
        for p in range(10):
            S(f"v_pk_add_f32 v[{ACC+2*p}:{ACC+2*p+1}], v[{ACC+2*p}:{ACC+2*p+1}], v[{X1U+2*p}:{X1U+2*p+1}]")
        for j in range(3):
            S.wait([rd[j, nu] for nu in range(5)])
            for p in range(10):
                S(f"v_pk_add_f32 v[{ACC+2*p}:{ACC+2*p+1}], v[{ACC+2*p}:{ACC+2*p+1}], v[{RING+20*j+2*p}:{RING+20*j+2*p+1}]")
        S.wait(ty)
        for p in range(10):
            S(f"v_pk_fma_f32 v[{X1U+2*p}:{X1U+2*p+1}], v[{XU+2*p}:{XU+2*p+1}], v[{vMR}:{vMR+1}], v[{vMR}:{vMR+1}] op_sel:[0,1,0] op_sel_hi:[1,1,0]")
            S(f"v_lshlrev_b32 v{U+2*p}, 16, v{Y+p}")
            S(f"v_and_b32 v{U+2*p+1}, s{sMASK}, v{Y+p}")
        for p in range(10):
            S(f"v_pk_mul_f32 v[{U+2*p}:{U+2*p+1}], v[{U+2*p}:{U+2*p+1}], v[{X1U+2*p}:{X1U+2*p+1}]")
        T0 = RING
        for p in range(10):
            S(f"v_pk_mul_f32 v[{T0+2*p}:{T0+2*p+1}], v[{ACC+2*p}:{ACC+2*p+1}], s[{sNL2E}:{sNL2E+1}] op_sel_hi:[1,0]")
        for p in range(20):
            S(f"v_exp_f32 v{T0+p}, v{T0+p}")
        for p in range(10):
            S(f"v_pk_add_f32 v[{T0+2*p}:{T0+2*p+1}], v[{T0+2*p}:{T0+2*p+1}], 1.0 op_sel_hi:[1,0]")
        for p in range(20):
            S(f"v_rcp_f32 v{T0+p}, v{T0+p}")
        for p in range(10):
            S(f"v_pk_mul_f32 v[{T0+2*p}:{T0+2*p+1}], v[{T0+2*p}:{T0+2*p+1}], v[{ACC+2*p}:{ACC+2*p+1}]")
        for p in range(10):
            S(f"v_pk_fma_f32 v[{T0+2*p}:{T0+2*p+1}], v[{T0+2*p}:{T0+2*p+1}], v[{U+2*p}:{U+2*p+1}], v[{XU+2*p}:{XU+2*p+1}]")
        O = 100
        S(f"v_mul_u32_u24 v248, 160, v{vT}")
        S(f"v_lshl_add_u32 v248, v{vQ}, 3, v248")
        S(f"s_add_u32 s99, s99, {L_OUT}")
        S(f"v_add_u32 v248, s99, v248")
        S(f"v_add_u32 v249, s99, v{vL16}")
        for tau in range(5):
            for e in range(2):
                p = 2 * tau + e
                S(f"v_cvt_pk_bf16_f32 v{O+p}, v{T0+2*p}, v{T0+2*p+1}")
            S.ds(f"ds_write_b64 v248, v[{O+2*tau}:{O+2*tau+1}] offset:{32*tau}")
        S(f"s_mul_i32 s{sA}, s{sT0}, 1280")
        S(f"s_add_u32 s{sA}, s{sA}, s{sCB160}")
        rr = []
        for j in range(3):
            if j == 2:
                S("s_mov_b32 exec_hi, 0")
            rr.append(S.ds(f"ds_read_b128 v[{140+4*j}:{143+4*j}], v249 offset:{1024*j}"))
        S("s_mov_b64 exec, -1")
        for j in range(3):
            S.wait(rr[j])
            if j == 2:
                S("s_mov_b32 exec_hi, 0")
            S.vm(f"buffer_store_dwordx4 v[{140+4*j}:{143+4*j}], v{vNAT+j}, {srd(S_OUT)}, s{sA} offen")
        S("s_mov_b64 exec, -1")
        self.stamp(S, "end")

    def finish(self):
        S = self.S
        if self.diag:
            S.wait_all()
            S("s_memrealtime s[90:91]")
            S.wait_all(vm=False, ds=True)
            S("v_writelane_b32 v39, s88, 30")
            S("v_writelane_b32 v39, s90, 31")
            S(f"s_lshl_b32 s{sA}, s{sRB}, 3")
            S(f"s_add_u32 s{sA}, s{sA}, s{sCB}")
            S(f"s_lshl_b32 s{sA}, s{sA}, 2")
            S(f"s_add_u32 s{sA}, s{sA}, s{sW}")
            S(f"s_lshl_b32 s{sA}, s{sA}, 7")
            S(f"s_add_u32 s{sA}, s{sA}, {WS_STAMP}")
            S(f"v_lshlrev_b32 v40, 2, v{vLANE}")
            S("s_mov_b32 exec_hi, 0")
            S.vm(f"buffer_store_dword v39, v40, {srd(S_WS)}, s{sA} offen")
            S.wait_all()
        S("L_end:")
        S("s_endpgm")

    def build(self):
        phases = [self.prologue, self.gemm1, self.window1, self.gemm2, self.gemm3, self.conv, self.gemm4]
        for ph in phases:
            self.S.comment("==== " + ph.__name__)
            ph()
            if self.stop == ph.__name__:
                self.S.wait_all()
                break
        self.finish()
        ops = resolve_waits(self.S.ops)
        ops, npad = pad_hazards(ops)
        return ops, npad


HEADER = """; Fused persistent kernel: x + (LN(x) * H3conv(k,v)) * silu(S-MLP mixer(LN(x)))
; @launch grid=(256,1,1) block=(256,1,1) lds=163840
.amdgcn_target "amdgcn-amd-amdhsa--gfx950"
.text
.globl {name}
.p2align 8
.type {name},@function
{name}:
"""
FOOTER = """
.fill 8192, 4, 0xbf800000
s_endpgm
.section .rodata,"a"
.p2align 6
.amdhsa_kernel {name}
  .amdhsa_next_free_vgpr 512
  .amdhsa_next_free_sgpr 102
  .amdhsa_accum_offset 256
  .amdhsa_group_segment_fixed_size 0
  .amdhsa_kernarg_size 112
  .amdhsa_user_sgpr_count 2
  .amdhsa_user_sgpr_kernarg_segment_ptr 1
  .amdhsa_system_sgpr_workgroup_id_x 1
  .amdhsa_float_denorm_mode_32 3
.end_amdhsa_kernel
"""


def generate(**kw):
    g = Gen(**kw)
    ops, npad = g.build()
    txt = HEADER.format(name=NAME) + render(ops) + FOOTER.format(name=NAME)
    return txt, g, npad


if __name__ == "__main__":
    import argparse
    ap = argparse.ArgumentParser()
    ap.add_argument("-o", default="recurrent_scan__ssm_conv_h3__mixer_s_mlp__prompt.s")
    ap.add_argument("--diag", action="store_true")
    ap.add_argument("--stop", default=None)
    a = ap.parse_args()
    txt, g, npad = generate(diag=a.diag, stop=a.stop)
    open(a.o, "w").write(txt)
    print("written", a.o, "lines", txt.count("\n"), "nop pads", npad, "stamps", g.stamp_names)
```

```python
import re


class Op:
    __slots__ = ("text", "kind", "tok", "opt", "cost")

    def __init__(self, text, kind="i", tok=None, cost=4):
        self.text = text
        self.kind = kind
        self.tok = tok
        self.opt = False
        self.cost = cost


class Tok:
    __slots__ = ("cls", "name")

    def __init__(self, cls, name=""):
        self.cls = cls
        self.name = name


class Stream:
    def __init__(self):
        self.ops = []

    def __call__(self, text, cost=None):
        for line in text.strip().split("\n"):
            line = line.strip()
            if not line or line.startswith(";"):
                continue
            m = line.split()[0]
            if m.endswith(":"):
                self.ops.append(Op(line, "label", cost=0))
            elif m.startswith("buffer_") or m.startswith("global_"):
                self.vm(line)
            elif m.startswith("ds_"):
                self.ds(line)
            else:
                c = cost
                if c is None:
                    c = 8 if m.startswith("v_mfma") or m in TRANS else 4
                self.ops.append(Op(line, "i", cost=c))
        return self

    def vm(self, text):
        t = Tok("vm", text)
        self.ops.append(Op(text, "vm", t))
        return t

    def ds(self, text):
        t = Tok("ds", text)
        self.ops.append(Op(text, "ds", t))
        return t

    def wait(self, *toks):
        flat = []
        for t in toks:
            if t is None:
                continue
            if isinstance(t, (list, tuple)):
                flat.extend(x for x in t if x is not None)
            else:
                flat.append(t)
        self.ops.append(Op("", "wait", tok=flat, cost=0))

    def wait_all(self, vm=True, ds=True):
        self.ops.append(Op("", "waitall", tok=(vm, ds), cost=0))

    def barrier(self):
        self.ops.append(Op("s_barrier", "i"))

    def optbeg(self):
        self.ops.append(Op("", "optbeg", cost=0))

    def optend(self):
        self.ops.append(Op("", "optend", cost=0))

    def save_done(self):
        self.ops.append(Op("", "savedone", cost=0))

    def restore_done(self):
        self.ops.append(Op("", "restoredone", cost=0))

    def comment(self, s):
        self.ops.append(Op("; " + s, "raw", cost=0))

    def extend(self, other):
        self.ops.extend(other.ops if isinstance(other, Stream) else other)

    def groups(self):
        return self.ops


def merge(main, side_groups, start=0, every=64):
    out = []
    acc = 0
    nxt = start
    gi = 0
    for op in main.ops:
        while gi < len(side_groups) and acc >= nxt and op.kind not in ("label",):
            out.extend(side_groups[gi])
            acc += sum(o.cost for o in side_groups[gi])
            gi += 1
            nxt += every
        out.append(op)
        acc += op.cost
    rest = side_groups[gi:]
    s = Stream()
    s.ops = out
    return s, rest


TRANS = {"v_exp_f32", "v_rcp_f32", "v_rsq_f32", "v_log_f32", "v_sqrt_f32", "v_sin_f32", "v_cos_f32"}


def resolve_waits(ops):
    out = []
    q = {"vm": [], "ds": []}
    done = {"vm": 0, "ds": 0}
    depth = 0
    saved = []
    saved2 = []
    pos = {}
    mx = {"vm": 63, "ds": 15}
    for op in ops:
        if op.kind == "optbeg":
            depth += 1
            saved.append((dict(done), {"vm": len(q["vm"]), "ds": len(q["ds"])}))
            continue
        if op.kind == "optend":
            depth -= 1
            d, lens = saved.pop()
            for c in ("vm", "ds"):
                for i in range(lens[c], len(q[c])):
                    q[c][i] = (q[c][i][0], True, i < done[c])
                done[c] = d[c]
            continue
        if op.kind == "savedone":
            saved2.append(dict(done))
            continue
        if op.kind == "restoredone":
            done = saved2.pop()
            continue
        if op.kind == "resolved":
            out.append(op)
            continue
        if op.kind in ("vm", "ds"):
            c = op.kind
            pos[id(op.tok)] = len(q[c])
            q[c].append((op.tok, False, False))
            out.append(op)
            continue
        if op.kind == "waitall":
            vm, ds = op.tok
            parts = []
            if vm:
                parts.append("vmcnt(0)")
                done["vm"] = len(q["vm"])
            if ds:
                parts.append("lgkmcnt(0)")
                done["ds"] = len(q["ds"])
            out.append(Op("s_waitcnt " + " ".join(parts), "i"))
            continue
        if op.kind == "wait":
            need = {"vm": -1, "ds": -1}
            for t in op.tok:
                p = pos[id(t)]
                if q[t.cls][p][2]:
                    continue
                need[t.cls] = max(need[t.cls], p)
            parts = []
            for c in ("vm", "ds"):
                p = need[c]
                if p < done[c]:
                    continue
                n = sum(1 for i in range(p + 1, len(q[c])) if not q[c][i][1])
                n = min(n, mx[c])
                parts.append(("vmcnt(%d)" if c == "vm" else "lgkmcnt(%d)") % n)
                k = len(q[c])
                cnt = 0
                while k > p + 1 and cnt < n:
                    k -= 1
                    if not q[c][k][1]:
                        cnt += 1
                done[c] = p + 1
            if parts:
                out.append(Op("s_waitcnt " + " ".join(parts), "i"))
            continue
        out.append(op)
    return out


_REG = re.compile(r"(?<![\w.])([vas])(?:\[(\d+):(\d+)\]|(\d+)\b)")


def regs_of(s):
    r = set()
    for m in _REG.finditer(s):
        k = m.group(1)
        if m.group(2) is not None:
            for i in range(int(m.group(2)), int(m.group(3)) + 1):
                r.add((k, i))
        else:
            r.add((k, int(m.group(4))))
    if re.search(r"\bvcc\b", s):
        r.add(("s", "vcc"))
    if re.search(r"\bm0\b", s):
        r.add(("s", "m0"))
    if re.search(r"\bexec(_lo|_hi)?\b", s):
        r.add(("s", "exec"))
    return r


def split_ops(text):
    text = text.split(";")[0].strip()
    parts = text.split(None, 1)
    mn = parts[0]
    rest = parts[1] if len(parts) > 1 else ""
    ops = []
    cur = ""
    d = 0
    for ch in rest:
        if ch == "[":
            d += 1
        if ch == "]":
            d -= 1
        if ch == "," and d == 0:
            ops.append(cur.strip())
            cur = ""
        else:
            cur += ch
    if cur.strip():
        ops.append(cur.strip())
    if ops:
        last = ops[-1].split()
        ops[-1] = last[0]
        mods = " ".join(last[1:])
    else:
        mods = ""
    return mn, ops, mods


class Info:
    pass


def analyze(text):
    mn, ops, mods = split_ops(text)
    I = Info()
    I.mn = mn
    I.w = set()
    I.r = set()
    I.cls = "other"
    I.srcc = set()
    I.ab = set()
    I.sdata = set()
    I.states = 1
    R = [regs_of(o) for o in ops]
    allr = set().union(*R) if R else set()
    if mn == "s_nop":
        I.states = int(ops[0], 0) + 1
        I.cls = "nop"
    elif mn.startswith("v_mfma"):
        I.cls = "mfma"
        I.w = R[0]
        I.ab = R[1] | R[2]
        I.srcc = R[3]
        I.r = I.ab | I.srcc
    elif mn.startswith("v_"):
        I.cls = "valu"
        base = mn.replace("_e32", "").replace("_e64", "").replace("_dpp", "").replace("_sdwa", "")
        I.trans = base in TRANS
        I.dpp = mn.endswith("_dpp") or "quad_perm" in mods or "row_" in mods
        I.dot = base.startswith("v_dot")
        I.perml = base.startswith("v_permlane")
        I.rdlane = base in ("v_readfirstlane_b32", "v_readlane_b32")
        I.w = set(R[0])
        I.r = set().union(*R[1:]) if len(R) > 1 else set()
        if I.perml:
            I.w = R[0] | R[1]
            I.r = R[0] | R[1]
        if base in ("v_fmac_f32", "v_dot2c_f32_bf16", "v_pk_fmac_f16") or I.dpp:
            I.r |= R[0]
        if base.startswith("v_cndmask") and len(ops) == 3:
            I.r.add(("s", "vcc"))
        if base.startswith("v_cmpx"):
            I.w.add(("s", "exec"))
    elif mn.startswith("buffer_") or mn.startswith("global_"):
        I.cls = "vmem"
        lds = " lds" in (" " + mods) or "_lds_" in mn
        if "load" in mn and not lds:
            I.w = R[0]
            I.r = set().union(*R[1:])
        else:
            I.r = allr
            if "store" in mn and ("x4" in mn or "x3" in mn):
                I.sdata = R[0] if mn.startswith("buffer_") else R[1]
        if lds:
            I.r.add(("s", "m0"))
            I.usesm0 = True
    elif mn.startswith("ds_"):
        I.cls = "ds"
        if mn.startswith("ds_read"):
            I.w = R[0]
            I.r = set().union(*R[1:]) if len(R) > 1 else set()
        else:
            I.r = allr
        if "addtid" in mn:
            I.r.add(("s", "m0"))
            I.usesm0 = True
    elif mn.startswith("s_"):
        I.cls = "salu"
        if mn.startswith("s_cmp") or mn.startswith("s_cbranch") or mn in (
            "s_branch", "s_waitcnt", "s_barrier", "s_endpgm", "s_sleep", "s_setprio"):
            I.r = allr
        else:
            I.w = R[0] if R else set()
            I.r = set().union(*R[1:]) if len(R) > 1 else set()
            if "saveexec" in mn:
                I.w = I.w | {("s", "exec")}
    for a in ("trans", "dpp", "dot", "perml", "rdlane", "usesm0"):
        if not hasattr(I, a):
            setattr(I, a, False)
    return I


def isv(x):
    return x[0] in ("v", "a")


def need_states(p, c):
    n = 0
    pv = {x for x in p.w if isv(x)}
    ps = {x for x in p.w if x[0] == "s"}
    if p.cls == "valu":
        if c.cls == "mfma" and pv & c.r:
            n = max(n, 2)
        if c.cls == "valu":
            if p.trans and not c.trans and pv & c.r:
                n = max(n, 1)
            if p.trans and c.trans and pv & c.r:
                n = max(n, 1)
            if c.rdlane and pv & c.r:
                n = max(n, 1)
            if (c.perml or c.dpp) and pv & c.r:
                n = max(n, 2)
            if ps & c.r:
                n = max(n, 4 if c.mn.startswith("v_readlane") or c.mn.startswith("v_writelane") else 2)
            if p.dot and pv & (c.r | c.w):
                if c.mn == p.mn:
                    _, ops, _ = split_ops(c.text)
                    ab = set().union(*[regs_of(o) for o in ops[1:3]])
                    if pv & ab:
                        n = max(n, 3)
                else:
                    n = max(n, 3)
        if p.dot and c.cls in ("vmem", "ds", "mfma") and pv & (c.r | c.w):
            n = max(n, 3)
        if c.cls == "vmem" and ps & c.r:
            n = max(n, 5)
        if ("s", "exec") in p.w and c.cls == "mfma":
            n = max(n, 4)
    if p.cls == "mfma":
        if c.cls == "mfma":
            if pv & c.ab:
                n = max(n, 8)
            if pv & c.srcc and pv != c.srcc:
                n = max(n, 6)
            if pv & c.w and pv != c.srcc:
                n = max(n, 6)
        elif c.cls in ("valu", "vmem", "ds"):
            if pv & (c.r | c.w):
                n = max(n, 8)
        if c.cls == "valu" and p.srcc & c.w:
            n = max(n, 3)
    if p.cls == "vmem" and p.sdata and p.sdata & c.w:
        n = max(n, 2 if c.cls == "valu" else 1)
    if p.cls == "salu" and ("s", "m0") in p.w and c.usesm0:
        n = max(n, 1)
    return n


def pad_hazards(ops, window=10):
    items = []
    for op in ops:
        if op.kind == "resolved" and op.text.endswith(":"):
            op.kind = "label"
        if op.kind == "resolved" and op.text.startswith(";"):
            op.kind = "raw"
        if op.kind in ("label", "raw"):
            items.append((op, None))
        else:
            I = analyze(op.text)
            I.text = op.text
            items.append((op, I))
    labels = {op.text.rstrip(":"): i for i, (op, I) in enumerate(items) if op.kind == "label"}
    preds = {}
    for i, (op, I) in enumerate(items):
        if I is not None and (I.mn.startswith("s_cbranch") or I.mn == "s_branch"):
            tgt = op.text.split()[1]
            if tgt in labels:
                preds.setdefault(labels[tgt], []).append(i)
    pads = [0] * len(items)

    def back_paths(i, budget):
        res = []

        def rec(j, dist):
            while j >= 0 and dist < budget:
                op, I = items[j]
                if op.kind == "label":
                    for b in preds.get(j, []):
                        rec(b, dist)
                    j -= 1
                    k = j
                    while k >= 0 and items[k][1] is None and items[k][0].kind != "label":
                        k -= 1
                    if k >= 0 and items[k][1] is not None and items[k][1].mn in ("s_branch", "s_endpgm"):
                        return
                    continue
                if I is None:
                    j -= 1
                    continue
                res.append((I, dist))
                dist += I.states + pads[j]
                j -= 1

        rec(i - 1, 0)
        return res

    for _ in range(3):
        changed = False
        for i, (op, I) in enumerate(items):
            if I is None:
                continue
            worst = 0
            for P, dist in back_paths(i, window):
                n = need_states(P, I) - dist
                worst = max(worst, n)
            if worst > pads[i]:
                pads[i] = worst
                changed = True
        if not changed:
            break
    out = []
    npad = 0
    for (op, I), p in zip(items, pads):
        if p > 0:
            npad += 1
            out.append(Op("s_nop %d" % (p - 1), "i"))
        out.append(op)
    return out, npad


def render(ops):
    lines = []
    for op in ops:
        if op.kind == "label":
            lines.append(op.text)
        else:
            lines.append("    " + op.text)
    return "\n".join(lines)


def vr(a, n=1, k="v"):
    return f"{k}{a}" if n == 1 else f"{k}[{a}:{a+n-1}]"


def ar(a, n=1):
    return vr(a, n, "a")
```

```python
import sys, os, struct
sys.path.insert(0, os.path.dirname(os.path.abspath(__file__)))
from asmlib import *

NAME = "recurrent_scan__ssm_conv_h3__mixer_s_mlp__prompt_kernel"

WS_FLAGS = 0
WS_H = 0x10000
WS_ST1 = 0x290000
WS_X1 = 0x2B0000
WS_PS = 0x530000
WS_H3 = 0x550000
WS_KVR = 0xC50000
WS_YT = 0xEE0000
WS_W4P = 0x1160000
WS_STAMP = 0x1390000
WS_SIZE = 0x1400000
FL_F1, FL_F2, FL_F3, FL_KV, FL_P, FL_Y = 0, 128, 256, 384, 416, 448
NINIT = 16

LDS_SIZE = 163840
L_W1 = 0
L_XR = 102400
XR_W = 12288
O_CS1 = 11520
L_KVT = 151552
L_W2 = 0
L_W3 = 0
L_CS3P = 143360
L_CS3F = 145408
CONV_W = 17920
C_H0, C_H2, C_KVA, C_KVB = 0, 4224, 8448, 13088
L_RB = 73728
L_YT = 143360
L_OUT = 153600

S_X, S_W, S_WS, S_K, S_V, S_M, S_OUT, S_DBG = 4, 8, 12, 16, 20, 24, 28, 32
P_Q, P_K, P_V, P_SK, P_SSMK, P_SSMD, P_W1, P_W2, P_W3, P_W4, P_OUT, P_DBG, P_WS = 36, 38, 40, 42, 44, 46, 50, 52, 54, 56, 58, 60, 62
sW, sRB, sCB, sT0 = 64, 65, 66, 67
sGC = 68
sNL2E, sINV, sEPS, sMASK, sONES = 70, 71, 72, 73, 74
sCB160 = 75
sA, sB, sC, sD = 76, 77, 78, 79
sE, sF, sG, sH = 48, 49, 3, 2
sR5, sR4 = 80, 81
sS0, sS1, sS2, sS3, sS4, sS5 = 82, 83, 84, 85, 86, 87
sP0 = 92
sJJ, sPP, sU, sW4 = 96, 97, 98, 99
sX, sY = 100, 101

vLANE, vL16, vT, vL8 = 0, 1, 2, 3
vNAT = 4
vTR = 9
vXT = 12
vX1 = 22
vMR = 32
vONE = 34
vFA = 35
vFD = 36
vQ = 37
vZERO = 38


def srd(reg):
    return f"s[{reg}:{reg+3}]"


def f2u(x):
    return struct.unpack("<I", struct.pack("<f", x))[0]


class Item:
    def __init__(self):
        self.pre = Stream()
        self.post = Stream()

    def flat(self):
        return self.pre.ops + self.post.ops


def tcost(op):
    if op.text.startswith("v_mfma"):
        return 16
    return op.cost


def sprinkle(main, items, start, every):
    out = []
    acc, nxt, gi, guard = 0, start, 0, 0
    ops = main.ops
    for i, op in enumerate(ops):
        t = op.text
        plain = op.kind == "i" and not t.startswith("s_") and not t.startswith("v_cmp") and guard == 0
        if plain and gi < len(items) and acc >= nxt:
            it = items[gi]
            gi += 1
            out.extend(it.pre.ops)
            out.append(op)
            out.extend(it.post.ops)
            acc += tcost(op) + sum(tcost(o) for o in it.flat())
            nxt += every
            continue
        if op.kind == "optbeg":
            guard += 1
        if op.kind == "optend":
            guard -= 1
        if t.startswith("s_mov_b64 exec") or t.startswith("s_mov_b32 exec_lo") or t.startswith("s_mov_b32 exec_hi, 0"):
            if t == "s_mov_b64 exec, -1":
                guard -= 1
            elif not t.startswith("s_mov_b32 exec_hi, 0x"):
                guard += 1
        out.append(op)
        acc += tcost(op)
    s = Stream()
    s.ops = out
    return s, items[gi:]


class Gen:
    def __init__(self, diag=False, stop=None, ld="sc1", mapping="4x8", rot=False, **opt):
        self.diag = diag
        self.stop = stop
        self.S = Stream()
        self.nstamp = 0
        self.nlabel = 0
        self.ld = ld
        self.mapping = mapping
        self.rot = rot
        self.opt = opt
        self.stamp_names = []

    def o(self, name, default):
        return self.opt.get(name, default)

    def label(self, base):
        self.nlabel += 1
        return f"L_{base}_{self.nlabel}"

    def stamp(self, S, name):
        if not self.diag:
            return
        if name in self.stamp_names:
            k = self.stamp_names.index(name)
        else:
            k = self.nstamp
            self.nstamp += 1
            self.stamp_names.append(name)
        S("s_memrealtime s[90:91]" if self.o("rt", 0) else "s_memtime s[90:91]")
        S.wait_all(vm=False, ds=True)
        S(f"v_writelane_b32 v39, s90, {k}")

    def mksrd(self, S, reg, ptr, size):
        S(f"s_mov_b64 s[{reg}:{reg+1}], s[{ptr}:{ptr+1}]")
        S(f"s_mov_b32 s{reg+2}, {size}")
        S(f"s_mov_b32 s{reg+3}, 0x20000")

    def ldsaddr(self, basereg, off):
        k = off // 65536
        return f"v{basereg+k} offset:{off - 65536*k}"

    def dma_item(self, vaddr, sr, soff, m0reg, m0c, off=0, flags="", mask=None, pre=None):
        it = Item()
        if pre:
            it.pre(pre)
        it.pre(f"s_add_u32 m0, s{m0reg}, {m0c}")
        o = f" offset:{off}" if off else ""
        fl = f" {flags}" if flags else ""
        if mask:
            it.post(mask)
        it.tok = it.post.vm(f"buffer_load_dwordx4 v{vaddr}, {srd(sr)}, {soff} offen{o}{fl} lds")
        if mask:
            it.post("s_mov_b64 exec, -1")
        return it

    def vm_item(self, text, pre=None, mask=None):
        it = Item()
        if pre:
            it.pre(pre)
        if mask:
            it.post(mask)
        it.tok = it.post.vm(text)
        if mask:
            it.post("s_mov_b64 exec, -1")
        return it

    @staticmethod
    def put(S, items):
        for it in items:
            S.extend(it.flat())

    def divpat(self, S, dst, j, div, stride, tmp, dst2=None):
        magic = (1 << 16) // div + 1
        assert all(((p * magic) >> 16) == p // div for p in range(64 * j, 64 * j + 64))
        a, b, c = tmp, tmp + 1, tmp + 2
        S(f"v_add_u32 v{a}, {64*j}, v{vLANE}")
        S(f"v_mul_u32_u24 v{b}, {magic}, v{a}")
        S(f"v_lshrrev_b32 v{b}, 16, v{b}")
        S(f"v_mul_u32_u24 v{c}, {div}, v{b}")
        S(f"v_sub_u32 v{a}, v{a}, v{c}")
        S(f"v_lshlrev_b32 v{a}, 4, v{a}")
        S(f"v_mul_u32_u24 v{c}, {stride}, v{b}")
        S(f"v_add_u32 v{dst}, v{c}, v{a}")
        if dst2 is not None:
            S(f"v_bfe_u32 v{c}, v{b}, 2, 2")
            S(f"v_lshlrev_b32 v{c}, 3, v{c}")
            S(f"v_and_b32 v{dst2}, 3, v{b}")
            S(f"v_add_u32 v{c}, v{c}, v{dst2}")
            S(f"v_lshrrev_b32 v{b}, 4, v{b}")
            S(f"v_lshl_add_u32 v{c}, v{b}, 2, v{c}")
            S(f"v_mul_u32_u24 v{c}, {stride}, v{c}")
            S(f"v_add_u32 v{dst2}, v{c}, v{a}")

    def qreduce2(self, S, a, b, t):
        S(f"v_permlane16_swap_b32 v{a}, v{b}")
        S(f"v_add_f32 v{a}, v{a}, v{b}")
        S(f"v_mov_b32 v{t}, v{a}")
        S(f"v_permlane32_swap_b32 v{a}, v{t}")
        S(f"v_add_f32 v{a}, v{a}, v{t}")
        S(f"v_mov_b32 v{b}, v{a}")
        S(f"v_permlane16_swap_b32 v{a}, v{b}")

    def gelu_pairs(self, S, pairs, tmp, KA, KB, width=4):
        for i in range(0, len(pairs), width):
            ch = pairs[i:i + width]
            T = [tmp + 2 * k for k in range(len(ch))]
            for (z, d), t in zip(ch, T):
                S(f"v_pk_mul_f32 v[{t}:{t+1}], v[{z}:{z+1}], v[{z}:{z+1}]")
            for (z, d), t in zip(ch, T):
                S(f"v_pk_fma_f32 v[{t}:{t+1}], v[{t}:{t+1}], v[{KA}:{KA+1}], v[{KA}:{KA+1}] op_sel:[0,0,1] op_sel_hi:[1,0,1]")
            for (z, d), t in zip(ch, T):
                S(f"v_pk_mul_f32 v[{t}:{t+1}], v[{t}:{t+1}], v[{z}:{z+1}]")
            for (z, d), t in zip(ch, T):
                S(f"v_exp_f32 v{t}, v{t}")
                S(f"v_exp_f32 v{t+1}, v{t+1}")
            for (z, d), t in zip(ch, T):
                S(f"v_pk_fma_f32 v[{t}:{t+1}], v[{t}:{t+1}], v[{KB}:{KB+1}], v[{KB}:{KB+1}] op_sel:[0,1,1] op_sel_hi:[1,1,1]")
            for (z, d), t in zip(ch, T):
                S(f"v_rcp_f32 v{t}, v{t}")
                S(f"v_rcp_f32 v{t+1}, v{t+1}")
            for (z, d), t in zip(ch, T):
                S(f"v_pk_mul_f32 v[{t}:{t+1}], v[{t}:{t+1}], v[{z}:{z+1}]")
            for (z, d), t in zip(ch, T):
                S(f"v_cvt_pk_bf16_f32 v{d}, v{t}, v{t+1}")

    def gelu_consts(self, S, r, KA):
        S(f"v_mul_f32 v{KA}, v{r}, v{r}")
        S(f"v_mul_f32 v{KA+1}, s{sGC+1}, v{r}")
        S(f"v_mul_f32 v{KA}, v{KA}, v{r}")
        S(f"v_mul_f32 v{KA}, s{sGC}, v{KA}")

    def poll_load(self, S, vdst, vaddr, sr, soff="0"):
        return S.vm(f"buffer_load_dword v{vdst}, v{vaddr}, {srd(sr)}, {soff} offen sc1")

    def poll_check(self, S, tok, vdst, vaddr, sr, soff="0", val=1):
        lp, dn = self.label("spin"), self.label("ok")
        S.wait(tok)
        S(f"v_cmp_ne_u32 vcc, {val}, v{vdst}")
        S(f"s_cbranch_vccz {dn}")
        S.optbeg()
        S(f"s_mov_b32 s{sD}, 0")
        S(f"{lp}:")
        self.poll_load(S, vdst, vaddr, sr, soff)
        S(f"s_add_u32 s{sD}, s{sD}, 1")
        S(f"s_cmp_gt_u32 s{sD}, 400000")
        S(f"s_cbranch_scc1 {dn}")
        S.wait_all(vm=True, ds=False)
        S(f"v_cmp_ne_u32 vcc, {val}, v{vdst}")
        S(f"s_cbranch_vccnz {lp}")
        S.optend()
        S(f"{dn}:")

    def flag_store(self, S, sreg):
        S("s_mov_b64 exec, 1")
        t = S.vm(f"buffer_store_dword v{vONE}, v{vZERO}, {srd(S_WS)}, s{sreg} offen sc1")
        S("s_mov_b64 exec, -1")
        return t

    def mod5(self, S, dst, src, add, tmp):
        S(f"s_add_u32 s{dst}, s{src}, {add}")
        S(f"s_cmp_ge_u32 s{dst}, 5")
        S(f"s_cselect_b32 s{tmp}, 5, 0")
        S(f"s_sub_u32 s{dst}, s{dst}, s{tmp}")

    def prologue(self):
        S = self.S
        S("s_cmp_ge_u32 s2, 256")
        S("s_cbranch_scc1 L_end")
        S("s_load_dwordx16 s[36:51], s[0:1], 0")
        S("s_load_dwordx8 s[52:59], s[0:1], 64")
        S("s_load_dwordx4 s[60:63], s[0:1], 96")
        if self.diag:
            S("s_memrealtime s[88:89]")
            S("v_mov_b32 v39, 0")
        S(f"v_lshrrev_b32 v190, 6, v0")
        S(f"v_and_b32 v{vLANE}, 63, v0")
        S(f"v_readfirstlane_b32 s{sW}, v190")
        S("s_getpc_b64 s[82:83]")
        S(f"s_lshr_b32 s{sB}, s2, 3")
        S(f"s_mul_i32 s{sA}, s{sB}, 11")
        S(f"s_mul_i32 s{sC}, s{sW}, 3")
        S(f"s_add_u32 s{sA}, s{sA}, s{sC}")
        S(f"v_add_u32 v190, s{sA}, v{vLANE}")
        S(f"v_lshlrev_b32 v190, 7, v190")
        S("s_mov_b64 exec, 7")
        S.vm("global_load_dword v191, v190, s[82:83]")
        S("s_mov_b64 exec, -1")
        S(f"s_and_b32 s{sA}, s2, 7")
        if self.mapping == "4x8":
            S(f"s_and_b32 s{sCB}, s{sB}, 7")
            S(f"s_lshr_b32 s{sB}, s{sB}, 3")
            S(f"s_lshl_b32 s{sA}, s{sA}, 2")
            S(f"s_add_u32 s{sRB}, s{sA}, s{sB}")
        else:
            S(f"s_and_b32 s{sCB}, s{sB}, 3")
            S(f"s_and_b32 s{sC}, s{sA}, 1")
            S(f"s_lshl_b32 s{sC}, s{sC}, 2")
            S(f"s_add_u32 s{sCB}, s{sCB}, s{sC}")
            S(f"s_lshr_b32 s{sB}, s{sB}, 2")
            S(f"s_lshr_b32 s{sA}, s{sA}, 1")
            S(f"s_lshl_b32 s{sA}, s{sA}, 3")
            S(f"s_add_u32 s{sRB}, s{sA}, s{sB}")
        S(f"v_and_b32 v{vT}, 15, v{vLANE}")
        S(f"v_lshrrev_b32 v{vQ}, 4, v{vLANE}")
        S(f"s_lshr_b32 s{sA}, s{sCB}, 2")
        S(f"s_add_u32 s{sA}, s{sA}, 1")
        S(f"s_sub_u32 s{sB}, 0, s{sA}")
        S(f"s_bitcmp1_b32 s{sCB}, 1")
        S(f"s_cselect_b32 s{sA}, s{sA}, s{sB}")
        S(f"s_lshl_b32 s{sT0}, s{sRB}, 6")
        S(f"s_lshl_b32 s{sB}, s{sW}, 4")
        S(f"s_add_u32 s{sT0}, s{sT0}, s{sB}")
        S(f"s_add_u32 s{sA}, s{sA}, s{sT0}")
        S(f"v_add_u32 v164, s{sA}, v{vQ}")
        S(f"v_mul_i32_i24 v164, 1280, v164")
        S(f"v_xor_b32 v165, v{vT}, v{vQ}")
        S(f"v_lshlrev_b32 v165, 4, v165")
        S(f"v_add_u32 v160, v164, v165")
        for i in range(1, 4):
            S(f"v_xor_b32 v{160+i}, {64*i}, v160")
            S(f"v_add_u32 v{160+i}, {5120*i}, v{160+i}")
        S(f"s_mul_i32 s{sY}, s{sW}, {XR_W}")
        S(f"s_add_u32 s{sY}, s{sY}, {L_XR}")
        S(f"s_mul_i32 s{sCB160}, s{sCB}, 160")
        if self.o("rot1", 1):
            S(f"s_add_u32 s{sA}, s{sRB}, s{sCB}")
            S(f"s_mul_i32 s{sB}, s{sA}, 52429")
            S(f"s_lshr_b32 s{sB}, s{sB}, 18")
            S(f"s_mul_i32 s{sB}, s{sB}, 5")
            S(f"s_sub_u32 s{sR5}, s{sA}, s{sB}")
        else:
            S(f"s_mov_b32 s{sR5}, 0")
        S(f"v_lshlrev_b32 v{vL16}, 4, v{vLANE}")
        S(f"s_cmp_eq_u32 s{sW}, 3")
        S(f"s_cselect_b32 s{sG}, s2, {NINIT}")
        S("s_waitcnt lgkmcnt(0)")
        self.stamp(S, "kernarg")
        self.mksrd(S, S_X, P_Q, 2621440)
        self.t_x, self.t_w1 = {}, {}
        self.xitems = {g: self.x_group(g) for g in range(5)}
        self.w1items = {st: self.w1_stage(st) for st in range(5)}
        self.put(S, self.xitems[0])
        self.mksrd(S, S_W, P_W1, 819200)
        for j in range(5):
            self.divpat(S, vNAT + j, j, 10, 1280, 180, dst2=168 + j)
            self.put(S, [self.w1items[0][j]])
        self.mksrd(S, S_WS, P_WS, WS_SIZE)
        self.mksrd(S, S_DBG, P_DBG, 256)
        skip = self.label("noinit")
        S(f"s_cmp_ge_u32 s{sG}, {NINIT}")
        S(f"s_cbranch_scc1 {skip}")
        S.optbeg()
        for r in range(4):
            S(f"v_mov_b32 v{192+r}, 0")
        S(f"s_lshl_b32 s{sB}, s{sG}, 12")
        self.t_init = [S.vm(f"buffer_store_dwordx4 v[192:195], v{vL16}, {srd(S_WS)}, s{sB} offen offset:{1024*i} sc1") for i in range(4)]
        S.optend()
        S(f"{skip}:")
        S(f"v_lshlrev_b32 v196, 7, v{vLANE}")
        if self.o("touch", 1):
            self.mksrd(S, S_M, P_W2, 819200)
            S(f"s_mul_i32 s{sA}, s2, {25*128}")
            S(f"s_mul_i32 s{sB}, s{sW}, {7*128}")
            S(f"s_add_u32 s{sA}, s{sA}, s{sB}")
            S("s_mov_b64 exec, 0x7f")
            S.vm(f"buffer_load_dword v197, v196, {srd(S_M)}, s{sA} offen")
            S("s_mov_b64 exec, -1")
            S(f"s_mul_i32 s{sX}, s2, {68*128}")
            S(f"s_mul_i32 s{sB}, s{sW}, {17*128}")
            S(f"s_add_u32 s{sX}, s{sX}, s{sB}")
        self.mksrd(S, S_K, P_K, 2621440)
        self.mksrd(S, S_V, P_V, 2621440)
        EX = Stream()
        if self.o("touch", 1):
            self.mksrd(EX, S_M, P_W3, 2211840)
            EX("s_mov_b64 exec, 0x1ffff")
            EX.vm(f"buffer_load_dword v197, v196, {srd(S_M)}, s{sX} offen")
            EX("s_mov_b64 exec, -1")
        self.mksrd(EX, S_M, P_SK, 5120)
        EX(f"s_mul_i32 s{sA}, s{sCB}, 640")
        EX(f"v_lshlrev_b32 v198, 3, v{vT}")
        self.t_sk = [EX.vm(f"buffer_load_dwordx2 v[{200+2*tau}:{201+2*tau}], v198, {srd(S_M)}, s{sA} offen offset:{128*tau}") for tau in range(5)]
        self.pp_load(EX)
        self.extras = EX
        if self.o("exstage", -1) == -1:
            S.extend(EX)
        S(f"v_lshlrev_b32 v{vL8}, 3, v{vLANE}")
        S(f"v_add_u32 v{vL8}, 2048, v{vL8}")
        S(f"v_lshrrev_b32 v180, 2, v{vLANE}")
        S(f"v_mul_u32_u24 v180, 160, v180")
        S(f"v_and_b32 v181, 3, v{vLANE}")
        S(f"v_lshl_add_u32 v{vTR}, v181, 3, v180")
        S(f"v_add_u32 v{vTR+1}, 0x10000, v{vTR}")
        S(f"v_add_u32 v{vTR+2}, 0x20000, v{vTR}")
        S(f"v_lshrrev_b32 v180, 2, v{vT}")
        S(f"v_lshlrev_b32 v180, 10, v180")
        S(f"v_and_b32 v181, 3, v{vT}")
        S(f"v_lshl_add_u32 v180, v181, 8, v180")
        S(f"v_add_u32 v180, s{sY}, v180")
        S(f"v_xor_b32 v181, v{vT}, v{vQ}")
        S(f"v_lshl_add_u32 v164, v181, 4, v180")
        for e in range(1, 4):
            S(f"v_xor_b32 v{164+e}, {64*e}, v164")
        C1 = -2.0 * 1.4426950408889634 * 0.7978845608028654
        S(f"s_mov_b32 s{sGC}, {f2u(C1*0.044715):#x}")
        S(f"s_mov_b32 s{sGC+1}, {f2u(C1):#x}")
        S(f"s_mov_b32 s{sNL2E}, {f2u(-1.4426950408889634):#x}")
        S(f"s_mov_b32 s{sINV}, {f2u(1.0/640):#x}")
        S(f"s_mov_b32 s{sEPS}, {f2u(1e-5):#x}")
        S(f"s_mov_b32 s{sMASK}, 0xffff0000")
        S(f"s_mov_b32 s{sONES}, 0x3f803f80")
        S(f"v_mov_b32 v{vONE}, 1")
        S(f"v_mov_b32 v{vZERO}, 0")
        for r in range(4):
            S(f"v_mov_b32 v{176+r}, s{sONES}")
        for r in range(8):
            S(f"v_mov_b32 v{180+r}, 0")
        for r in range(20):
            S(f"v_mov_b32 v{140+r}, 0")
        self.mksrd(S, S_OUT, P_OUT, 2621440)
        self.put(S, self.xitems[1] + self.w1items[1])
        if self.o("exstage", -1) == -2:
            S.extend(EX)
        skip = self.label("noinit2")
        S(f"s_cmp_ge_u32 s{sG}, {NINIT}")
        S(f"s_cbranch_scc1 {skip}")
        S.optbeg()
        S.wait(self.t_init)
        S("s_mov_b64 exec, 1")
        S.vm(f"buffer_atomic_add v{vONE}, v{vZERO}, {srd(S_DBG)}, 0 offen sc1")
        S("s_mov_b64 exec, -1")
        S.optend()
        S(f"{skip}:")

    def w1_slot_base(self, slot):
        return L_W1 + 5120 * slot

    def x_group(self, g):
        T = Stream()
        self.mod5(T, sS2, sR5, g, sS3)
        T(f"s_lshl_b32 s{sS2}, s{sS2}, 8")
        items = [self.dma_item(160 + i, S_X, f"s{sS2}", sY, 4096 * (g % 3) + 1024 * i) for i in range(4)]
        items[0].pre.ops = T.ops + items[0].pre.ops
        self.t_x[g] = [it.tok for it in items]
        return items

    def w1_stage(self, st):
        T = Stream()
        self.mod5(T, sS0, sR5, st, sS1)
        T(f"s_lshl_b32 s{sS0}, s{sS0}, 2")
        T(f"s_add_u32 s{sS0}, s{sS0}, s{sW}")
        T(f"s_mul_i32 s{sS0}, s{sS0}, 40960")
        T(f"s_add_u32 s{sS0}, s{sS0}, s{sCB160}")
        T(f"s_mul_i32 s{sS1}, s{sW}, 5120")
        items = [self.dma_item(168 + j, S_W, f"s{sS0}", sS1, self.w1_slot_base(4 * st) + 1024 * j) for j in range(5)]
        items[0].pre.ops = T.ops + items[0].pre.ops
        self.t_w1[st] = [it.tok for it in items]
        return items

    def gemm1(self):
        S = self.S
        XF, ACC, CS = 40, 120, 140
        cold, warm = self.kvx_items()
        WB = lambda s, nu: 20 * (s & 1) + 4 * nu

        def reads(s):
            out = []
            b = self.w1_slot_base(s)
            for nu in range(5):
                for jh in range(2):
                    T = Stream()
                    t = T.ds(f"ds_read_b64_tr_b16 a[{WB(s,nu)+2*jh}:{WB(s,nu)+2*jh+1}], {self.ldsaddr(vTR, b + 2560*jh + 32*nu)}")
                    out.append((T.ops, t, nu))
            return out

        rd = {}
        side = []
        ncold = self.o("ncold", [0, 0, 0, 0, 7])
        for st in range(5):
            S.wait(self.t_x[st])
            for e in range(4):
                s = 4 * st + e
                rd[s] = S.ds(f"ds_read_b128 v[{XF+4*s}:{XF+4*s+3}], v{164+e} offset:{4096*(st % 3)}")
            S.wait(self.t_w1[st])
            S.barrier()
            if st == 0:
                self.stamp(S, "bar0")
            if st == 4:
                self.stamp(S, "bar4")
            cur = reads(4 * st)
            for ops, t, nu in cur:
                S.extend(ops)
            if st + 2 < 5:
                side += self.xitems[st + 2] + self.w1items[st + 2]
            side += cold[:ncold[st]]
            cold = cold[ncold[st]:]
            X = Stream()
            self.stats1(X, st, rd, XF)
            X, side = sprinkle(X, side, 8, 70)
            S.extend(X)
            for s in range(4 * st, 4 * st + 4):
                nxt = reads(s + 1) if (s + 1) % 4 else []
                for nu in range(5):
                    if nu in (0, 2, 4):
                        S.wait([t for o, t, n in cur if n <= nu + 1])
                    it = None
                    if nu in (1, 3) and side:
                        it = side.pop(0)
                        S.extend(it.pre)
                    c = "0" if s == 0 else f"v[{ACC+4*nu}:{ACC+4*nu+3}]"
                    S(f"v_mfma_f32_16x16x32_bf16 v[{ACC+4*nu}:{ACC+4*nu+3}], a[{WB(s,nu)}:{WB(s,nu)+3}], v[{XF+4*s}:{XF+4*s+3}], {c}")
                    if it:
                        S.extend(it.post)
                    for ops, t, n in nxt[2 * nu:2 * nu + 2]:
                        S.extend(ops)
                lab = self.label("cs")
                S(f"s_cmp_lg_u32 s{sW}, {s % 4}")
                S(f"s_cbranch_scc1 {lab}")
                for nu in range(5):
                    S(f"v_mfma_f32_16x16x32_bf16 v[{CS+4*nu}:{CS+4*nu+3}], a[{WB(s,nu)}:{WB(s,nu)+3}], v[176:179], v[{CS+4*nu}:{CS+4*nu+3}]")
                S(f"{lab}:")
                cur = nxt
            self.put(S, side)
            side = []
            if self.o("exstage", -1) == st:
                S.extend(self.extras)
        side = cold
        S(f"v_lshlrev_b32 v189, 4, v{vQ}")
        S(f"v_add_u32 v188, s{sY}, v189")
        S(f"v_add_u32 v189, {L_XR}, v189")
        S("s_mov_b32 exec_lo, 0x00010001")
        S("s_mov_b32 exec_hi, 0x00010001")
        for nu in range(5):
            S.ds(f"ds_write_b128 v188, v[{CS+4*nu}:{CS+4*nu+3}] offset:{O_CS1 + 64*nu}")
        S("s_mov_b64 exec, -1")
        self.pp_read(S)
        S.wait_all(vm=False, ds=True)
        S.barrier()
        self.stamp(S, "g1mfma")
        rdc = {}
        for w in range(4):
            for nu in range(5):
                rdc[w, nu] = S.ds(f"ds_read_b128 v[{XF+20*w+4*nu}:{XF+20*w+4*nu+3}], v189 offset:{O_CS1 + XR_W*w + 64*nu}")
        self.stats1_fin(S)
        KA, KB = 190, 186
        E = Stream()
        HP = 100
        E(f"s_lshl_b32 s{sE}, s{sRB}, 2")
        E(f"s_add_u32 s{sE}, s{sE}, s{sW}")
        E(f"s_lshl_b32 s{sU}, s{sE}, 7")
        E(f"s_mul_i32 s{sE}, s{sE}, 20480")
        E(f"s_mul_i32 s{sF}, s{sCB}, 2560")
        E(f"s_add_u32 s{sF}, s{sF}, s{sE}")
        E(f"s_add_u32 s{sC}, s{sF}, {WS_H}")
        self.t_rdy = self.poll_load(E, 199, vZERO, S_DBG)
        E.wait([rdc[w, nu] for w in range(2) for nu in range(5)])
        for p in range(10):
            E(f"v_pk_add_f32 v[{XF+2*p}:{XF+2*p+1}], v[{XF+2*p}:{XF+2*p+1}], v[{XF+20+2*p}:{XF+20+2*p+1}]")
        E.wait(list(rdc.values()))
        for p in range(10):
            E(f"v_pk_add_f32 v[{XF+40+2*p}:{XF+40+2*p+1}], v[{XF+40+2*p}:{XF+40+2*p+1}], v[{XF+60+2*p}:{XF+60+2*p+1}]")
        for p in range(10):
            E(f"v_pk_add_f32 v[{XF+2*p}:{XF+2*p+1}], v[{XF+2*p}:{XF+2*p+1}], v[{XF+40+2*p}:{XF+40+2*p+1}]")
        for p in range(10):
            E(f"v_pk_fma_f32 v[{ACC+2*p}:{ACC+2*p+1}], v[{XF+2*p}:{XF+2*p+1}], v[{KB}:{KB+1}], v[{ACC+2*p}:{ACC+2*p+1}] op_sel_hi:[1,0,1]")
        st = []
        self.gelu_pairs(E, [(ACC + 2 * p, HP + p) for p in range(4)], 80, KA, KB)
        st.append(E.vm(f"buffer_store_dwordx4 v[{HP}:{HP+3}], v{vL16}, {srd(S_WS)}, s{sC} offen sc1"))
        self.gelu_pairs(E, [(ACC + 2 * p, HP + p) for p in range(4, 8)], 80, KA, KB)
        st.append(E.vm(f"buffer_store_dwordx4 v[{HP+4}:{HP+7}], v{vL16}, {srd(S_WS)}, s{sC} offen offset:1024 sc1"))
        self.gelu_pairs(E, [(ACC + 2 * p, HP + p) for p in range(8, 10)], 80, KA, KB)
        st.append(E.vm(f"buffer_store_dwordx2 v[{HP+8}:{HP+9}], v{vL8}, {srd(S_WS)}, s{sC} offen sc1"))
        self.t_hst = st + [self.t_st1]
        self.side = side + warm + self.w2_items()
        n0 = len(self.side) - 25
        E, self.side = sprinkle(E, self.side, self.o("s_e1", 10000), self.o("p_e1", 125))
        S.extend(E)
        k0 = max(0, len(self.side) - 25)
        self.put(S, self.side[:k0])
        self.side = self.side[k0:]
        self.stamp(S, "g1epi")

    def stats1(self, S, g, rd, XF):
        for e in range(4):
            s = 4 * g + e
            if e % 2 == 0:
                S.wait(rd[s], rd[s + 1])
            for r in range(4):
                S(f"v_dot2c_f32_bf16 v{180+r}, s{sONES}, v{XF+4*s+r}")
            for r in range(4):
                S(f"v_dot2c_f32_bf16 v{184+r}, v{XF+4*s+r}, v{XF+4*s+r}")

    def stats1_fin(self, S):
        S("v_add_f32 v180, v180, v181\n v_add_f32 v182, v182, v183\n v_add_f32 v184, v184, v185\n v_add_f32 v186, v186, v187")
        S("v_add_f32 v180, v180, v182\n v_add_f32 v181, v184, v186")
        self.qreduce2(S, 180, 181, 182)
        S(f"v_mul_f32 v184, s{sINV}, v180")
        S(f"v_mul_f32 v181, s{sINV}, v181")
        S(f"v_fma_f32 v181, -v184, v184, v181")
        S(f"v_max_f32 v181, 0, v181")
        S(f"v_add_f32 v182, s{sEPS}, v181")
        S(f"v_rsq_f32 v185, v182")
        S(f"s_lshl_b32 s{sA}, s{sRB}, 3")
        S(f"v_mul_f32 v181, v181, v185")
        S(f"v_mul_f32 v182, v182, v185")
        S(f"v_mul_f32 v181, v181, v185")
        S(f"v_add_f32 v181, s{sEPS}, v181")
        S(f"v_rsq_f32 v183, v181")
        S(f"s_add_u32 s{sA}, s{sA}, s{sCB}")
        S(f"v_mul_f32 v181, v181, v183")
        S(f"v_mul_f32 v183, v185, v183")
        S(f"v_mul_f32 v187, v181, v182")
        S(f"v_sub_f32 v186, 0, v184")
        self.gelu_consts(S, 183, 190)
        S(f"s_lshl_b32 s{sA}, s{sA}, 9")
        S(f"s_lshl_b32 s{sB}, s{sW}, 7")
        S(f"s_add_u32 s{sH}, s{sA}, s{sB}")
        S(f"s_add_u32 s{sA}, s{sH}, {WS_ST1 - 2048}")
        S("s_mov_b64 exec, 0xffff")
        self.t_st1 = S.vm(f"buffer_store_dwordx2 v[184:185], v{vL8}, {srd(S_WS)}, s{sA} offen sc1")
        S("s_mov_b64 exec, -1")

    def kvx_items(self):
        G, Wm = [], []
        self.t_k, self.t_v, self.t_xt = [], [], []
        T = Stream()
        T(f"s_sub_u32 s{sS2}, s{sT0}, 4")
        T(f"s_mul_i32 s{sS2}, s{sS2}, 1280")
        for j in range(4):
            T(f"v_add_u32 v{160+j}, s{sS2}, v{vNAT+j}")
        T(f"s_mul_i32 s{sS3}, s{sT0}, 1280")
        T(f"s_add_u32 s{sS3}, s{sS3}, s{sCB160}")
        for j in range(4):
            it = self.dma_item(160 + j, S_K, f"s{sCB160}", sY, 1024 * j, mask="s_mov_b64 exec, 0xff" if j == 3 else None)
            if j == 0:
                it.pre.ops = T.ops + it.pre.ops
            self.t_k.append(it.tok)
            G.append(it)
        for sr, base, lst, dst in ((S_V, 3200, self.t_v, G), (S_X, 5760, self.t_xt, Wm)):
            for j in range(3):
                it = self.dma_item(vNAT + j, sr, f"s{sS3}", sY, base + 1024 * j, mask="s_mov_b32 exec_hi, 0" if j == 2 else None)
                lst.append(it.tok)
                dst.append(it)
        return G, Wm

    def ssm_touch(self):
        it = Item()
        if self.o("touch", 1):
            T = it.pre
            self.mksrd(T, S_M, P_SSMK, 2621440)
            T(f"s_min_u32 s{sS2}, s{sRB}, 19")
            T(f"s_lshl_b32 s{sS2}, s{sS2}, 2")
            T(f"s_add_u32 s{sS2}, s{sS2}, s{sW}")
            T(f"s_mul_i32 s{sS3}, s{sCB}, 80")
            T(f"s_add_u32 s{sS2}, s{sS2}, s{sS3}")
            T(f"s_lshl_b32 s{sS2}, s{sS2}, 12")
            T(f"v_lshlrev_b32 v252, 7, v{vLANE}")
            it.post("s_mov_b32 exec_hi, 0")
            it.post.vm(f"buffer_load_dword v253, v252, {srd(S_M)}, s{sS2} offen")
            it.post("s_mov_b64 exec, -1")
        return it

    def pp_guard(self, S, fn):
        lab = self.label("nopp")
        S(f"s_cmp_ge_u32 s40, 560")
        S(f"s_cbranch_scc1 {lab}")
        S.optbeg()
        fn(S)
        S.optend()
        S(f"{lab}:")

    def pp_load(self, S):
        S(f"s_lshl_b32 s{sA}, s{sRB}, 3")
        S(f"s_add_u32 s{sA}, s{sA}, s{sCB}")
        S(f"s_lshl_b32 s40, s{sA}, 1")
        S(f"s_add_u32 s40, s40, s{sW}")
        S(f"s_add_u32 s{sA}, s{sA}, {512 - 208}")
        S(f"s_cmp_ge_u32 s{sRB}, 26")
        S(f"s_cselect_b32 s{sA}, s{sA}, 560")
        S(f"s_cmp_eq_u32 s{sW}, 2")
        S(f"s_cselect_b32 s40, s{sA}, s40")
        S(f"s_cmp_eq_u32 s{sW}, 3")
        S(f"s_cselect_b32 s40, 560, s40")

        def f(T):
            self.mksrd(T, S_M, P_W4, 2211840)
            T(f"s_mul_i32 s{sA}, s40, 6554")
            T(f"s_lshr_b32 s{sA}, s{sA}, 16")
            T(f"s_mul_i32 s{sB}, s{sA}, 10")
            T(f"s_sub_u32 s41, s40, s{sB}")
            T(f"s_mul_i32 s{sB}, s{sA}, 4682")
            T(f"s_lshr_b32 s36, s{sB}, 16")
            T(f"s_mul_i32 s{sB}, s36, 14")
            T(f"s_sub_u32 s37, s{sA}, s{sB}")
            T(f"s_mul_i32 s{sA}, s37, 21846")
            T(f"s_lshr_b32 s{sA}, s{sA}, 16")
            T(f"s_lshl_b32 s{sA}, s{sA}, 4")
            T(f"s_lshl_b32 s{sB}, s37, 5")
            T(f"s_add_u32 s{sA}, s{sA}, s{sB}")
            T(f"s_add_u32 s{sB}, s{sA}, 16")
            T(f"s_cmp_eq_u32 s37, 12")
            T(f"s_cselect_b32 s{sA}, 96, s{sA}")
            T(f"s_cselect_b32 s{sB}, 208, s{sB}")
            T(f"s_cmp_eq_u32 s37, 13")
            T(f"s_cselect_b32 s{sA}, 320, s{sA}")
            T(f"s_cselect_b32 s{sB}, 320, s{sB}")
            T(f"s_mul_i32 s{sC}, s36, 432")
            T(f"s_add_u32 s{sA}, s{sA}, s{sC}")
            T(f"s_add_u32 s{sB}, s{sB}, s{sC}")
            T(f"s_mul_i32 s{sA}, s{sA}, 1280")
            T(f"s_mul_i32 s{sB}, s{sB}, 1280")
            T(f"s_lshl_b32 s{sC}, s41, 7")
            T(f"s_add_u32 s{sA}, s{sA}, s{sC}")
            T(f"s_add_u32 s{sB}, s{sB}, s{sC}")
            T(f"v_lshrrev_b32 v210, 3, v{vLANE}")
            T(f"v_mul_u32_u24 v210, 1280, v210")
            T(f"v_and_b32 v211, 7, v{vLANE}")
            T(f"v_lshl_add_u32 v210, v211, 4, v210")
            T(f"s_lshl_b32 s{sC}, s{sW}, 12")
            T(f"s_add_u32 s{sC}, s{sC}, {L_KVT}")
            self.t_pp = []
            for i in range(4):
                d = self.dma_item(210, S_M, f"s{sA + (i >> 1)}", sC, 1024 * i,
                                  pre=f"s_add_u32 s{sA + (i >> 1)}, s{sA + (i >> 1)}, {8*1280}" if i & 1 else None)
                self.t_pp.append(d.tok)
                T.extend(d.flat())
            T(f"v_lshrrev_b32 v210, 2, v{vLANE}")
            T(f"v_lshlrev_b32 v210, 7, v210")
            T(f"v_and_b32 v211, 3, v{vLANE}")
            T(f"v_lshl_add_u32 v210, v211, 3, v210")
            T(f"v_add_u32 v210, s{sC}, v210")
        self.pp_guard(S, f)

    def pp_read(self, S):
        def f(T):
            T.wait(self.t_pp)
            for i in range(4):
                for jh in range(2):
                    r = 212 + 4 * i + 2 * jh
                    T.ds(f"ds_read_b64_tr_b16 v[{r}:{r+1}], v210 offset:{2048*jh + 32*i}")
        self.pp_guard(S, f)

    def pp_store(self, S):
        self.t_ppst = []

        def f(T):
            T(f"s_mul_i32 s38, s36, 71680")
            T(f"s_mul_i32 s{sA}, s37, 5120")
            T(f"s_add_u32 s38, s38, s{sA}")
            T(f"s_add_u32 s38, s38, {WS_W4P}")
            for i in range(4):
                T(f"s_lshl_b32 s{sA}, s41, 2")
                T(f"s_add_u32 s{sA}, s{sA}, {i}")
                T(f"s_mul_i32 s{sB}, s{sA}, 13108")
                T(f"s_lshr_b32 s{sB}, s{sB}, 16")
                T(f"s_lshl_b32 s{sA}, s{sA}, 10")
                T(f"s_mul_i32 s{sB}, s{sB}, {4*71680 - 5*1024}")
                T(f"s_add_u32 s{sA}, s{sA}, s{sB}")
                T(f"s_add_u32 s{sA}, s{sA}, s38")
                r = 212 + 4 * i
                self.t_ppst.append(T.vm(f"buffer_store_dwordx4 v[{r}:{r+3}], v{vL16}, {srd(S_WS)}, s{sA} offen sc1"))
        self.pp_guard(S, f)

    def pp_flag(self, S):
        def f(T):
            for i in (0, 3):
                T(f"s_lshl_b32 s{sA}, s41, 2")
                T(f"s_add_u32 s{sA}, s{sA}, {i}")
                T(f"s_mul_i32 s{sA}, s{sA}, 13108")
                T(f"s_lshr_b32 s{sA}, s{sA}, 16")
                T(f"s_mul_i32 s{sB}, s{sA}, 5")
                T(f"s_lshr_b32 s{sB}, s{sB}, 2")
                T(f"s_sub_u32 s{sB}, s41, s{sB}")
                T(f"s_lshl_b32 s{sC}, s37, 1")
                T(f"s_add_u32 s{sB}, s{sB}, s{sC}")
                T(f"s_lshl_b32 s{sB}, s{sB}, 2")
                T(f"s_lshl_b32 s{sA}, s{sA}, 2")
                T(f"s_add_u32 s{sA}, s{sA}, s36")
                T(f"s_lshl_b32 s{sA}, s{sA}, 7")
                T(f"s_add_u32 s{sA}, s{sA}, s{sB}")
                T(f"s_add_u32 s{sA}, s{sA}, {FL_P*128}")
                self.flag_store(T, sA)
        self.pp_guard(S, f)

    def w2_items(self):
        G = []
        self.t_w2 = []
        for i in range(5):
            T = Stream()
            if i == 0:
                self.mksrd(T, S_W, P_W2, 819200)
                T(f"s_mul_i32 s{sS0}, s{sW}, 40960")
                T(f"s_add_u32 s{sS0}, s{sS0}, s{sCB160}")
                T(f"s_mul_i32 s{sS1}, s{sW}, 5120")
            else:
                T(f"s_add_u32 s{sS0}, s{sS0}, {4*40960}")
            for j in range(5):
                it = self.dma_item(vNAT + j, S_W, f"s{sS0}", sS1, L_W2 + 20480 * i + 1024 * j)
                if j == 0:
                    it.pre.ops = T.ops + it.pre.ops
                self.t_w2.append(it.tok)
                G.append(it)
        return G

    def window1(self):
        S = self.S
        E = Stream()
        E(f"v_add_u32 v160, s{sY}, v{vTR}")
        E(f"v_mul_u32_u24 v161, 160, v{vT}")
        E(f"v_lshl_add_u32 v161, v{vQ}, 3, v161")
        E(f"v_add_u32 v161, s{sY}, v161")
        E(f"v_mul_u32_u24 v162, 144, v{vT}")
        E(f"v_lshlrev_b32 v163, 3, v{vQ}")
        E(f"v_sub_u32 v162, v162, v163")
        E(f"s_lshl_b32 s{sC}, s{sW}, 5")
        E(f"s_sub_u32 s{sC}, {L_KVT + 120}, s{sC}")
        E(f"v_add_u32 v162, s{sC}, v162")
        E.wait(self.t_k, self.t_v, self.t_xt, self.t_sk)
        rd = []
        for tau in range(5):
            b = 40 + 6 * tau
            a = E.ds(f"ds_read_b64_tr_b16 v[{b}:{b+1}], v160 offset:{32*tau}")
            c = E.ds(f"ds_read_b64_tr_b16 v[{b+2}:{b+3}], v160 offset:{640 + 32*tau}")
            d = E.ds(f"ds_read_b64_tr_b16 v[{b+4}:{b+5}], v160 offset:{3200 + 32*tau}")
            rd.append([a, c, d])
        txt_ = [E.ds(f"ds_read_b64 v[{vXT+2*tau}:{vXT+2*tau+1}], v161 offset:{5760 + 32*tau}") for tau in range(5)]
        FT = self.o("f1tau", 3)
        for tau in range(5):
            b = 40 + 6 * tau
            K, V, SK, O = 120, 128, 132, 136
            if tau == FT:
                self.signal_f1(E)
            E.wait(rd[tau])
            E(f"v_and_b32 v{K+1}, s{sMASK}, v{b}")
            E(f"v_lshlrev_b32 v{K+2}, 16, v{b+1}")
            E(f"v_and_b32 v{K+3}, s{sMASK}, v{b+1}")
            E(f"v_lshlrev_b32 v{K+4}, 16, v{b+2}")
            E(f"v_and_b32 v{K+5}, s{sMASK}, v{b+2}")
            E(f"v_lshlrev_b32 v{K+6}, 16, v{b+3}")
            E(f"v_and_b32 v{K+7}, s{sMASK}, v{b+3}")
            sk = 200 + 2 * tau
            E(f"v_lshlrev_b32 v{SK}, 16, v{sk}")
            E(f"v_and_b32 v{SK+1}, s{sMASK}, v{sk}")
            E(f"v_lshlrev_b32 v{SK+2}, 16, v{sk+1}")
            E(f"v_and_b32 v{SK+3}, s{sMASK}, v{sk+1}")
            E(f"v_lshlrev_b32 v{V}, 16, v{b+4}")
            E(f"v_and_b32 v{V+1}, s{sMASK}, v{b+4}")
            E(f"v_lshlrev_b32 v{V+2}, 16, v{b+5}")
            E(f"v_and_b32 v{V+3}, s{sMASK}, v{b+5}")
            for r in range(4):
                E(f"v_mul_f32 v{O+r}, v{K+4+r-3}, v{SK+3}")
            for i in (2, 1, 0):
                for r in range(4):
                    E(f"v_fmac_f32 v{O+r}, v{K+4+r-i}, v{SK+i}")
            for r in range(4):
                E(f"v_mul_f32 v{O+r}, v{O+r}, v{V+r}")
            P = 72 + 2 * tau
            E(f"v_cvt_pk_bf16_f32 v{P}, v{O+3}, v{O+2}")
            E(f"v_cvt_pk_bf16_f32 v{P+1}, v{O+1}, v{O}")
            E.ds(f"ds_write_b64 v162, v[{P}:{P+1}] offset:{16*144*tau}")
        if FT >= 5:
            self.signal_f1(E)
        E, self.side = sprinkle(E, self.side, 60, self.o("p_w1", 110))
        S.extend(E)
        self.stamp(S, "kvjob")
        S(f"s_add_u32 s{sC}, s{sW}, 1")
        S(f"s_min_u32 s{sC}, s{sC}, 3")
        S(f"s_sub_u32 s{sC}, s{sC}, s{sW}")
        S(f"s_lshl_b32 s{sC}, s{sC}, 7")
        S(f"v_lshlrev_b32 v{vFA}, 2, v{vLANE}")
        S(f"v_mov_b32 v163, s{sC}")
        S(f"v_cmp_lt_u32 vcc, 7, v{vLANE}")
        S(f"v_cndmask_b32 v{vFA}, v{vFA}, v163, vcc")
        NL = self.o("w2late", 5)
        D = Stream()
        for j in range(7):
            self.divpat(D, 166 + j, j, 14, 3456, 180)
        D, rest = sprinkle(D, self.side[:-NL] if NL else self.side, 0, 60)
        S.extend(D)
        self.put(S, rest)
        t_poll = self.poll_load(S, vFD, vFA, S_WS, f"s{sU}")
        self.put(S, self.side[-NL:] if NL else [])
        self.side = []
        self.poll_check(S, t_poll, vFD, vFA, S_WS, f"s{sU}")
        self.stamp(S, "f1seen")

    def signal_f1(self, E):
        E.wait(self.t_hst)
        self.poll_check(E, self.t_rdy, 199, vZERO, S_DBG, val=NINIT)
        E(f"s_lshl_b32 s{sC}, s{sCB}, 2")
        E(f"s_add_u32 s{sC}, s{sC}, s{sU}")
        self.flag_store(E, sC)

    @staticmethod
    def ksteps():
        out = []
        for P in range(4):
            for e, off in ((0, 0), (0, 1024), (1, 2560), (1, 3584)):
                f = 0 if off in (0, 2560) else 1
                r0 = 80 * (2 * P + e) + 32 * f
                out.append(("full", P, off, (r0, r0 + 16)))
            out.append(("half", P, None, (160 * P + 64, 160 * P + 144)))
        return out

    def a_items(self, reg, soffreg, step, pre=None):
        kind, P, off, rows = step
        if kind == "full":
            return [self.vm_item(f"buffer_load_dwordx4 v[{reg}:{reg+3}], v{vL16}, {srd(S_WS)}, s{soffreg} offen offset:{off} {self.ld}", pre=pre)]
        it = self.vm_item(f"buffer_load_dwordx2 v[{reg}:{reg+1}], v{vL8}, {srd(S_WS)}, s{soffreg} offen {self.ld}", pre=pre)
        it.tok2 = it.post.vm(f"buffer_load_dwordx2 v[{reg+2}:{reg+3}], v{vL8}, {srd(S_WS)}, s{soffreg} offen offset:2560 {self.ld}")
        it.tok = it.tok2
        return [it]

    def group_offsets(self, S, base_sreg, const):
        for g in range(4):
            S(f"s_add_u32 s{sP0+g}, s{base_sreg}, {const + 5120*g}")

    def w3_items(self, S):
        self.mksrd(S, S_W, P_W3, 2211840)
        if self.mapping == "4x8":
            S(f"s_bfe_u32 s{sA}, s{sRB}, 0x10002")
            S(f"s_lshl_b32 s{sA}, s{sA}, 3")
            S(f"s_add_u32 s{sJJ}, s{sA}, s{sCB}")
            S(f"s_lshr_b32 s{sPP}, s{sRB}, 3")
            S(f"s_lshl_b32 s{sPP}, s{sPP}, 2")
            S(f"s_and_b32 s{sA}, s{sRB}, 3")
            S(f"s_add_u32 s{sPP}, s{sPP}, s{sA}")
        else:
            S(f"s_and_b32 s{sA}, s{sRB}, 1")
            S(f"s_lshl_b32 s{sA}, s{sA}, 3")
            S(f"s_add_u32 s{sJJ}, s{sA}, s{sCB}")
            S(f"s_lshr_b32 s{sPP}, s{sRB}, 1")
        S(f"s_lshr_b32 s{sA}, s{sJJ}, 2")
        S(f"s_mul_i32 s{sA}, s{sA}, 27")
        S(f"s_and_b32 s{sB}, s{sJJ}, 3")
        S(f"s_mul_i32 s{sB}, s{sB}, 7")
        S(f"s_add_u32 s{sA}, s{sA}, s{sB}")
        S(f"s_lshl_b32 s{sA}, s{sA}, 5")
        S(f"s_mul_i32 s{sS2}, s{sW}, {32*3456}")
        S(f"s_add_u32 s{sS2}, s{sS2}, s{sA}")
        S(f"s_mul_i32 s{sS3}, s{sW}, 7168")
        w3 = {}
        self.t_w3 = {}
        for i in range(5):
            w3[i] = []
            for j in range(7):
                it = self.dma_item(166 + j, S_W, f"s{sS1}", sS3, L_W3 + 28672 * i + 1024 * j,
                                   pre=f"s_add_u32 s{sS1}, s{sS2}, {4*32*3456*i}" if j == 0 else None)
                self.t_w3.setdefault(i, []).append(it.tok)
                w3[i].append(it)
        return w3

    def gemm2(self):
        S = self.S
        AF, ACC = 40, 120
        steps = self.ksteps()
        NB = 12
        WB = lambda s, nu: 20 * (s % NB) + 4 * nu
        self.group_offsets(S, sE, WS_H)
        loads, ta = [], {}
        for s, st in enumerate(steps):
            its = self.a_items(AF + 4 * s, sP0 + st[1], st)
            ta[s] = its[-1].tok
            loads += its
        N0 = self.o("g2n0", 6)
        self.put(S, loads[:N0])
        S(f"v_lshrrev_b32 v160, 3, v{vLANE}")
        S(f"v_and_b32 v161, 7, v{vLANE}")
        S(f"v_lshlrev_b32 v161, 4, v161")
        S(f"v_mul_u32_u24 v162, 144, v160")
        S(f"v_add_u32 v162, v162, v161")
        S(f"s_mul_i32 s{sC}, s{sW}, {20*144}")
        S(f"s_add_u32 s{sC}, s{sC}, {L_KVT}")
        S(f"v_add_u32 v162, s{sC}, v162")
        S(f"v_lshl_add_u32 v160, v160, 12, v161")
        S(f"s_mul_i32 s{sC}, s{sCB}, 80")
        S(f"s_mul_i32 s{sD}, s{sW}, 20")
        S(f"s_add_u32 s{sC}, s{sC}, s{sD}")
        S(f"s_lshl_b32 s{sC}, s{sC}, 12")
        S(f"s_lshl_b32 s{sD}, s{sRB}, 7")
        S(f"s_sub_u32 s{sC}, s{sC}, s{sD}")
        S(f"s_add_u32 s{sS0}, s{sC}, {WS_KVR + 3968}")
        S(f"s_lshl_b32 s{sA}, s{sW}, 4")
        S(f"v_add_u32 v164, s{sA}, v{vT}")
        S(f"v_cmp_eq_u32 vcc, 63, v164")
        S(f"v_lshlrev_b32 v164, 3, v164")
        S(f"v_add_u32 v164, 8, v164")
        S(f"v_mov_b32 v165, {1024 + 62*8}")
        S(f"s_lshl_b32 s{sS4}, s{sRB}, 12")
        S(f"s_add_u32 s{sS4}, s{sS4}, {WS_ST1}")
        S(f"v_cndmask_b32 v164, v164, v165, vcc")
        w3 = self.w3_items(S)
        S.wait(self.t_w2)
        S.wait_all(vm=False, ds=True)
        S.barrier()
        self.stamp(S, "w2bar")
        rr = [S.ds(f"ds_read_b128 v[{140+4*i}:{143+4*i}], v162 offset:{8*144*i}") for i in range(3)]
        extra, t_side = [], []
        for i in range(3):
            it = self.vm_item(f"buffer_store_dwordx4 v[{140+4*i}:{143+4*i}], v160, {srd(S_WS)}, s{sS0} offen sc1",
                              pre=f"s_add_u32 s{sS0}, s{sS0}, {8*4096}" if i else None, mask="s_mov_b32 exec_hi, 0" if i == 2 else None)
            it.pre.wait(rr[i])
            t_side.append(it.tok)
            extra.append(it)
        it = Item()
        self.pp_store(it.post)
        extra.append(it)
        it = self.vm_item(f"buffer_load_dwordx2 v[{vMR}:{vMR+1}], v164, {srd(S_WS)}, s{sS4} offen sc1")
        t_mr = it.tok
        early = w3[4] if self.o("w3early", 1) else []
        queue = loads[N0:] + [it] + extra + early
        rdtok = {}

        def reads(s):
            out = []
            rows = steps[s][3]
            for nu in range(5):
                for jh in range(2):
                    T = Stream()
                    t = T.ds(f"ds_read_b64_tr_b16 a[{WB(s,nu)+2*jh}:{WB(s,nu)+2*jh+1}], {self.ldsaddr(vTR, L_W2 + 160*rows[jh] + 32*nu)}")
                    rdtok.setdefault(s, []).append(t)
                    out.append(T.ops)
            return out

        PRE = self.o("g2pre", 2)
        for s in range(PRE):
            for k, ops in enumerate(reads(s)):
                if k == 0 and queue:
                    self.put(S, [queue.pop(0)])
                S.extend(ops)
        for s in range(20):
            nxt = reads(s + PRE) if s + PRE < 20 else []
            S.wait(ta[s], rdtok[s])
            for nu in range(5):
                it = None
                if nu in ((1, 3) if s < self.o("g2two", 6) else (1,)) and queue:
                    it = queue.pop(0)
                    S.extend(it.pre)
                c = "0" if s == 0 else f"v[{ACC+4*nu}:{ACC+4*nu+3}]"
                S(f"v_mfma_f32_16x16x32_bf16 v[{ACC+4*nu}:{ACC+4*nu+3}], a[{WB(s,nu)}:{WB(s,nu)+3}], v[{AF+4*s}:{AF+4*s+3}], {c}")
                if it:
                    S.extend(it.post)
                for ops in nxt[2 * nu:2 * nu + 2]:
                    S.extend(ops)
        self.put(S, queue)
        S.barrier()
        self.stamp(S, "g2mfma")
        rounds = [0, 1, 2, 3] if early else [4, 0, 1, 2, 3]
        wq = [it for i in rounds for it in w3[i]]
        E = Stream()
        XFp = 40
        E.wait(t_mr)
        E(f"v_mul_f32 v{vMR}, v{vMR}, v{vMR+1}")
        E(f"v_sub_f32 v{vMR}, 0, v{vMR}")
        for p in range(10):
            E(f"v_lshlrev_b32 v{XFp+2*p}, 16, v{vXT+p}")
            E(f"v_and_b32 v{XFp+2*p+1}, s{sMASK}, v{vXT+p}")
        for p in range(10):
            E(f"v_pk_fma_f32 v[{ACC+2*p}:{ACC+2*p+1}], v[{XFp+2*p}:{XFp+2*p+1}], v[{vMR}:{vMR+1}], v[{ACC+2*p}:{ACC+2*p+1}] op_sel:[0,1,0] op_sel_hi:[1,1,1]")
        for p in range(10):
            E(f"v_pk_add_f32 v[{ACC+2*p}:{ACC+2*p+1}], v[{ACC+2*p}:{ACC+2*p+1}], v[{vMR}:{vMR+1}] op_sel_hi:[1,0]")
        E(f"s_add_u32 s{sC}, s{sF}, {WS_X1}")
        PK = 100
        for p in range(10):
            E(f"v_cvt_pk_bf16_f32 v{PK+p}, v{ACC+2*p}, v{ACC+2*p+1}")
        st = []
        st.append(E.vm(f"buffer_store_dwordx4 v[{PK}:{PK+3}], v{vL16}, {srd(S_WS)}, s{sC} offen sc1"))
        st.append(E.vm(f"buffer_store_dwordx4 v[{PK+4}:{PK+7}], v{vL16}, {srd(S_WS)}, s{sC} offen offset:1024 sc1"))
        st.append(E.vm(f"buffer_store_dwordx2 v[{PK+8}:{PK+9}], v{vL8}, {srd(S_WS)}, s{sC} offen sc1"))
        for r in range(4):
            E(f"v_mov_b32 v{80+r}, 0")
        for p in range(10):
            E(f"v_dot2c_f32_bf16 v{80+(p&1)}, s{sONES}, v{PK+p}")
            E(f"v_dot2c_f32_bf16 v{82+(p&1)}, v{PK+p}, v{PK+p}")
        E(f"s_add_u32 s{sC}, s{sH}, {WS_PS - 2048}")
        E("v_add_f32 v80, v80, v81\n v_add_f32 v81, v82, v83")
        self.qreduce2(E, 80, 81, 82)
        E("s_mov_b64 exec, 0xffff")
        st.append(E.vm(f"buffer_store_dwordx2 v[80:81], v{vL8}, {srd(S_WS)}, s{sC} offen sc1"))
        E("s_mov_b64 exec, -1")
        E, wq = sprinkle(E, wq, self.o("s_e2", 0), self.o("p_e2", 130))
        S.extend(E)
        self.stamp(S, "g2epi")
        E = Stream()
        for p in range(10):
            E(f"v_mov_b32 v{vX1+p}, v{PK+p}")
        E(f"v_lshrrev_b32 v183, 2, v{vLANE}")
        E(f"v_mul_u32_u24 v183, 224, v183")
        E(f"v_and_b32 v184, 3, v{vLANE}")
        E(f"v_lshl_add_u32 v{vTR}, v184, 3, v183")
        E(f"v_add_u32 v{vTR+1}, 0x10000, v{vTR}")
        E(f"v_add_u32 v{vTR+2}, 0x20000, v{vTR}")
        E(f"v_add_u32 v173, s{sS3}, v{vTR}")
        E(f"v_add_u32 v174, 0x10000, v173")
        for r in range(4):
            E(f"v_mov_b32 v{176+r}, s{sONES}")
        E(f"v_and_b32 v{vFA}, 7, v{vLANE}")
        E(f"v_lshlrev_b32 v{vFA}, 2, v{vFA}")
        E(f"v_bfe_u32 v183, v{vLANE}, 3, 1")
        E(f"v_lshl_add_u32 v{vFA}, v183, 7, v{vFA}")
        E, wq = sprinkle(E, wq, 0, 30)
        S.extend(E)
        S.wait(t_side, self.t_ppst)
        S(f"s_lshl_b32 s{sC}, s{sCB}, 2")
        S(f"s_add_u32 s{sC}, s{sC}, s{sW}")
        S(f"s_lshl_b32 s{sC}, s{sC}, 7")
        S(f"s_lshl_b32 s{sD}, s{sRB}, 2")
        S(f"s_add_u32 s{sC}, s{sC}, s{sD}")
        S(f"s_add_u32 s{sC}, s{sC}, {FL_KV*128}")
        self.flag_store(S, sC)
        self.pp_flag(S)
        CS = 120
        state = {"first": True}

        def colsum(i):
            S.wait(self.t_w3[i])
            tk = []
            for tau in range(7):
                b = 4 * tau
                tk.append([S.ds(f"ds_read_b64_tr_b16 a[{b+2*jh}:{b+2*jh+1}], {self.ldsaddr(173, 28672*i + 3584*jh + 32*tau)}") for jh in range(2)])
            for tau in range(7):
                b = 4 * tau
                if tau in (0, 4):
                    S.wait(tk[:tau + 4][-1])
                c = "0" if state["first"] else f"v[{CS+4*tau}:{CS+4*tau+3}]"
                S(f"v_mfma_f32_16x16x32_bf16 v[{CS+4*tau}:{CS+4*tau+3}], a[{b}:{b+3}], v[176:179], {c}")
            state["first"] = False

        total = 7 * len(rounds)

        def upto(n):
            while total - len(wq) < n and wq:
                self.put(S, [wq.pop(0)])
        base = 0 if early else 7
        upto(self.o("w3n1", 9))
        S.wait(st)
        S(f"s_lshl_b32 s{sC}, s{sCB}, 2")
        S(f"s_add_u32 s{sC}, s{sC}, s{sU}")
        S(f"s_add_u32 s{sC}, s{sC}, {FL_F2*128}")
        self.flag_store(S, sC)
        self.stamp(S, "f2sent")
        S(f"s_lshl_b32 s{sA}, s{sPP}, 3")
        S(f"s_lshl_b32 s{sB}, s{sW}, 1")
        S(f"s_add_u32 s{sG}, s{sA}, s{sB}")
        S(f"s_lshl_b32 s{sY}, s{sG}, 7")
        S(f"s_add_u32 s{sY}, s{sY}, {FL_F2*128}")
        colsum(4)
        upto(base + 14)
        colsum(0)
        upto(base + 21)
        t_poll = self.poll_load(S, vFD, vFA, S_WS, f"s{sY}")
        colsum(1)
        upto(base + 28)
        colsum(2)
        self.poll_check(S, t_poll, vFD, vFA, S_WS, f"s{sY}")
        self.stamp(S, "f2seen")
        self.colsum_last = lambda: colsum(3)

    def w4_reg(self, phi):
        if phi < 64:
            return ("a", 4 * phi)
        if phi == 64:
            return ("v", 232)
        return ("v", 236 + 2 * (phi - 65))

    def w4_items(self, record=True):
        G = []
        tk = {}
        for phi in range(70):
            T = Stream()
            if phi == 0:
                T(f"s_lshl_b32 s{sW4}, s{sCB}, 2")
                T(f"s_add_u32 s{sW4}, s{sW4}, s{sW}")
                T(f"s_mul_i32 s{sW4}, s{sW4}, 71680")
                T(f"s_add_u32 s{sW4}, s{sW4}, {WS_W4P}")
            elif phi % 4 == 0:
                T(f"s_add_u32 s{sW4}, s{sW4}, 4096")
            k, r = self.w4_reg(phi)
            n = 4 if phi <= 64 else 2
            it = self.vm_item(f"buffer_load_dwordx{n} {k}[{r}:{r+n-1}], v{vL16}, {srd(S_WS)}, s{sW4} offen offset:{1024*(phi%4)} {self.ld}")
            it.pre.ops = T.ops
            tk[phi] = it.tok
            G.append(it)
        if record:
            self.t_w4 = tk
        return G

    def gemm3(self):
        S = self.S
        RING, NR, ACC, TMP = 40, 18, 184, 240
        CS = 120
        steps = self.ksteps()
        AR = lambda s, h: RING + 8 * (s % NR) + 4 * h
        AC = lambda h, tau: ACC + 28 * h + 4 * tau
        WB = lambda s, tau: 200 + 28 * (s & 1) + 4 * tau
        S(f"s_mul_i32 s{sB}, s{sG}, 20480")
        self.group_offsets(S, sB, WS_X1)
        ta, loads = {}, {}
        for s, st in enumerate(steps):
            i0 = self.a_items(AR(s, 0), sP0 + st[1], st)
            i1 = self.a_items(AR(s, 1), sS4, st, pre=f"s_add_u32 s{sS4}, s{sP0+st[1]}, 20480" if s % 5 == 0 else None)
            ta[s] = i1[-1].tok
            loads[s] = i0 + i1
        N0 = self.o("g3n0", 3)
        for s in range(N0):
            self.put(S, loads[s])
        S(f"s_mul_i32 s{sA}, s{sW}, 448")
        S(f"v_lshlrev_b32 v250, 4, v{vQ}")
        S(f"v_add_u32 v250, {L_CS3P}, v250")
        S(f"v_add_u32 v249, s{sA}, v250")
        self.colsum_last()
        S(f"s_lshr_b32 s{sA}, s{sG}, 2")
        S(f"s_lshl_b32 s{sA}, s{sA}, 12")
        S(f"s_and_b32 s{sB}, s{sG}, 3")
        S(f"s_lshl_b32 s{sB}, s{sB}, 7")
        S(f"s_add_u32 s{sA}, s{sA}, s{sB}")
        S(f"s_add_u32 s{sS5}, s{sA}, {WS_PS}")
        S(f"v_lshlrev_b32 v248, 10, v{vQ}")
        S(f"v_lshl_add_u32 v248, v{vT}, 3, v248")
        S("s_mov_b32 exec_lo, 0x00010001")
        S("s_mov_b32 exec_hi, 0x00010001")
        for tau in range(7):
            S.ds(f"ds_write_b128 v249, v[{CS+4*tau}:{CS+4*tau+3}] offset:{64*tau}")
        S("s_mov_b64 exec, -1")
        self.put(S, loads[N0])
        S.wait_all(vm=False, ds=True)
        S.barrier()
        self.stamp(S, "w3bar")
        rdtok = {}

        def reads(s):
            out = []
            rows = steps[s][3]
            for tau in range(7):
                for jh in range(2):
                    T = Stream()
                    t = T.ds(f"ds_read_b64_tr_b16 a[{WB(s,tau)+2*jh}:{WB(s,tau)+2*jh+1}], {self.ldsaddr(vTR, L_W3 + 224*rows[jh] + 32*tau)}")
                    rdtok.setdefault((s, tau), []).append(t)
                    out.append(T.ops)
            return out

        for ops in reads(0):
            S.extend(ops)
        S(f"s_min_u32 s{sA}, s{sRB}, 19")
        S(f"s_lshl_b32 s{sA}, s{sA}, 2")
        S(f"s_add_u32 s{sA}, s{sA}, s{sW}")
        S(f"s_mul_i32 s{sB}, s{sA}, 3277")
        S(f"s_lshr_b32 s{sB}, s{sB}, 16")
        S(f"s_lshl_b32 s{sC}, s{sCB}, 2")
        S(f"s_add_u32 s{sB}, s{sB}, s{sC}")
        S(f"s_lshl_b32 s{sB}, s{sB}, 7")
        S(f"s_add_u32 s{sB}, s{sB}, {FL_KV*128}")
        S(f"v_lshl_add_u32 v{vFA}, v{vLANE}, 2, s{sB}")
        S(f"s_add_u32 s{sC}, s{sC}, s{sW}")
        S(f"s_lshl_b32 s{sC}, s{sC}, 7")
        S(f"s_add_u32 s{sC}, s{sC}, {FL_P*128}")
        S(f"v_subrev_u32 v251, 32, v{vLANE}")
        S(f"v_min_u32 v251, 27, v251")
        S(f"v_lshl_add_u32 v251, v251, 2, s{sC}")
        S(f"v_cmp_lt_u32 vcc, 31, v{vLANE}")
        S(f"v_cndmask_b32 v{vFA}, v{vFA}, v251, vcc")
        itf = self.vm_item(f"buffer_load_dword v{vFD}, v{vFA}, {srd(S_WS)}, 0 offen sc1")
        t_fc = itf.tok
        its = Item()
        tps = [its.post.vm(f"buffer_load_dwordx2 v[{TMP+4*h+2*e}:{TMP+4*h+2*e+1}], v248, {srd(S_WS)}, s{sS5} offen offset:{512*e + 128*h} sc1")
               for h in range(2) for e in range(2)]
        w4 = self.w4_items()
        queue = []
        for s in range(N0 + 1, 20):
            queue += [(it, s) for it in loads[s]]
            if s == self.o("g3fc", 14):
                queue.append((itf, None))
        queue += [(its, None), (self.ssm_touch(), None)]
        nA = len(queue)
        NW4 = self.o("g3w4", 24)
        queue += [(it, None) for it in w4[:NW4]]
        qi = 0
        tcs = {}
        checked = False
        places = self.o("g3pl", (1, 5, 10))
        CP = 56
        for s in range(20):
            nxt = reads(s + 1) if s + 1 < 20 else []
            if s == 19:
                for w in range(2):
                    for tau in range(7):
                        T = Stream()
                        tcs[w, tau] = T.ds(f"ds_read_b128 v[{CP+28*w+4*tau}:{CP+28*w+4*tau+3}], v250 offset:{448*w + 64*tau}")
                        nxt.append(T.ops)
            if qi + len(places) > nA and not checked:
                self.poll_check(S, t_fc, vFD, vFA, S_WS)
                checked = True
            S.wait(ta[s], rdtok[s, 3])
            k = 0
            for tau in range(7):
                if tau == 4:
                    S.wait(rdtok[s, 6])
                for h in range(2):
                    it = None
                    if k in places and qi < len(queue) and (queue[qi][1] is None or queue[qi][1] < NR or queue[qi][1] - NR < s):
                        it = queue[qi][0]
                        qi += 1
                        S.extend(it.pre)
                    c = "0" if s == 0 else f"v[{AC(h,tau)}:{AC(h,tau)+3}]"
                    S(f"v_mfma_f32_16x16x32_bf16 v[{AC(h,tau)}:{AC(h,tau)+3}], a[{WB(s,tau)}:{WB(s,tau)+3}], v[{AR(s,h)}:{AR(s,h)+3}], {c}")
                    if it:
                        S.extend(it.post)
                    if k < len(nxt):
                        S.extend(nxt[k])
                    k += 1
        assert qi >= nA and checked
        self.w4i = qi - nA
        for w in (2, 3):
            for tau in range(7):
                tcs[w, tau] = S.ds(f"ds_read_b128 v[{CP+28*w+4*tau}:{CP+28*w+4*tau+3}], v250 offset:{448*w + 64*tau}")
        S.barrier()
        self.stamp(S, "g3mfma")
        conv_side = self.conv_items()
        E = Stream()
        E(f"s_lshl_b32 s{sA}, s{sG}, 4")
        E(f"s_add_u32 s{sA}, s{sA}, s{sJJ}")
        E(f"s_mul_i32 s{sX}, s{sA}, 3584")
        E(f"s_add_u32 s{sX}, s{sX}, {WS_H3}")
        E(f"s_add_u32 s{sY}, s{sX}, {16*3584}")
        E.wait(tps)
        for h in range(2):
            a = TMP + 4 * h
            E(f"v_add_f32 v{a}, v{a}, v{a+2}")
            E(f"v_add_f32 v{a+1}, v{a+1}, v{a+3}")
            self.qreduce2(E, a, a + 1, a + 2)
            E(f"v_mul_f32 v{a+2}, s{sINV}, v{a}")
            E(f"v_mul_f32 v{a+1}, s{sINV}, v{a+1}")
            E(f"v_fma_f32 v{a+1}, -v{a+2}, v{a+2}, v{a+1}")
            E(f"v_max_f32 v{a+1}, 0, v{a+1}")
            E(f"v_add_f32 v{a+3}, s{sEPS}, v{a+1}")
            E(f"v_rsq_f32 v{248+h}, v{a+3}")
            E(f"v_sub_f32 v{a+2}, 0, v{a+2}")
            E(f"v_mul_f32 v{a+3}, v{a+3}, v{248+h}")
            self.gelu_consts(E, 248 + h, a)
        E.wait([tcs[w, tau] for w in range(2) for tau in range(7)])
        for p in range(14):
            E(f"v_pk_add_f32 v[{CP+2*p}:{CP+2*p+1}], v[{CP+2*p}:{CP+2*p+1}], v[{CP+28+2*p}:{CP+28+2*p+1}]")
        E.wait(list(tcs.values()))
        for p in range(14):
            E(f"v_pk_add_f32 v[{CP+56+2*p}:{CP+56+2*p+1}], v[{CP+56+2*p}:{CP+56+2*p+1}], v[{CP+84+2*p}:{CP+84+2*p+1}]")
        for p in range(14):
            E(f"v_pk_add_f32 v[{CP+2*p}:{CP+2*p+1}], v[{CP+2*p}:{CP+2*p+1}], v[{CP+56+2*p}:{CP+56+2*p+1}]")
        st = []
        PK = 88
        for h in range(2):
            KA, KB = TMP + 4 * h, TMP + 4 * h + 2
            for p in range(14):
                a = AC(h, 0) + 2 * p
                E(f"v_pk_fma_f32 v[{a}:{a+1}], v[{CP+2*p}:{CP+2*p+1}], v[{KB}:{KB+1}], v[{a}:{a+1}] op_sel_hi:[1,0,1]")
            pk = PK + 16 * h
            for f in range(3):
                self.gelu_pairs(E, [(AC(h, 0) + 8 * f + 2 * p, pk + 4 * f + p) for p in range(4)], 40, KA, KB)
                st.append(E.vm(f"buffer_store_dwordx4 v[{pk+4*f}:{pk+4*f+3}], v{vL16}, {srd(S_WS)}, s{sX+h} offen offset:{1024*f} sc1"))
            self.gelu_pairs(E, [(AC(h, 0) + 24 + 2 * p, pk + 12 + p) for p in range(2)], 40, KA, KB)
            st.append(E.vm(f"buffer_store_dwordx2 v[{pk+12}:{pk+13}], v{vL8}, {srd(S_WS)}, s{sX+h} offen offset:1024 sc1"))
        E, rest = sprinkle(E, conv_side, 0, self.o("p_e3", 170))
        assert not rest
        S.extend(E)
        self.t_h3st = st
        self.w4all = w4
        self.stamp(S, "g3epi")

    def conv_items(self):
        G = []
        self.t_cv = []
        CV = 168
        it = Item()
        T = it.pre
        T(f"s_min_u32 s{sS0}, s{sRB}, 19")
        T(f"s_lshl_b32 s{sS0}, s{sS0}, 2")
        T(f"s_add_u32 s{sS0}, s{sS0}, s{sW}")
        T(f"s_mul_i32 s{sS1}, s{sCB}, 80")
        T(f"s_add_u32 s{sS1}, s{sS0}, s{sS1}")
        T(f"s_lshl_b32 s92, s{sS1}, 12")
        T(f"s_lshl_b32 s93, s{sS1}, 1")
        T(f"s_add_u32 s94, s92, {WS_KVR}")
        T(f"s_mul_i32 s95, s{sW}, {CONV_W}")
        self.mksrd(T, S_M, P_SSMK, 2621440)
        self.mksrd(T, S_K, P_SSMD, 1280)
        T(f"v_add_u32 v{CV}, 4, v{vL16}")
        T(f"v_add_u32 v{CV+1}, 2, v{vL16}")
        G.append(it)

        def guarded(fn, it=None):
            it = it or Item()
            T = it.post
            lab = self.label("ncv")
            T(f"s_cmp_ge_u32 s{sRB}, 20")
            T(f"s_cbranch_scc1 {lab}")
            T.optbeg()
            fn(T)
            T.optend()
            T(f"{lab}:")
            return it

        def small(T):
            self.t_cv.append(T.vm(f"buffer_load_dword v{CV+4}, v{vZERO}, {srd(S_M)}, s92 offen"))
            self.t_cv.append(T.vm(f"buffer_load_ushort v{CV+5}, v{vZERO}, {srd(S_K)}, s93 offen"))
        guarded(small, it)
        for i in range(0, 4, 2):
            for (va, sr, so, dst, fl) in ((vL16, S_M, 92, C_H0 + 64, ""), (CV, S_M, 92, C_H2 + 64, ""),
                                          (vL16, S_WS, 94, C_KVA, "sc1"), (CV + 1, S_WS, 94, C_KVB, "sc1")):
                def f(T, va=va, sr=sr, so=so, dst=dst, fl=fl, i=i):
                    for e in range(2):
                        self.t_cv.append(T.vm(f"buffer_load_dwordx4 v{va}, {srd(sr)}, s{so} offen offset:{1024*(i+e)} {fl} lds"))
                it = Item()
                it.pre(f"s_add_u32 m0, s95, {dst}")
                G.append(guarded(f, it))
        return G

    def a4_setup(self, S):
        for k in range(4):
            S(f"s_add_u32 s{sA}, s{sW}, {k}")
            S(f"s_and_b32 s{sA}, s{sA}, 3")
            S(f"s_lshl_b32 s{sB}, s{sRB}, 2")
            S(f"s_add_u32 s{sA}, s{sA}, s{sB}")
            S(f"s_lshl_b32 s{sA}, s{sA}, 2")
            S(f"s_add_u32 s{sA}, s{sA}, s{sW}")
            S(f"s_mul_i32 s{sA}, s{sA}, {4*3584}")
            S(f"s_add_u32 s{36+k}, s{sA}, {WS_H3}")

    def g4_order(self):
        TAIL = 3
        order = [(s, k) for s in range(14 - TAIL) for k in range(4)]
        for k in (1, 2, 3, 0):
            order += [(s, k) for s in range(14 - TAIL, 14)]
        NS = 28
        slot = {sk: (i + 10) % NS for i, sk in enumerate(order)}
        return TAIL, order, NS, slot

    def a4_item(self, s, k, slot):
        r = 120 + 4 * slot[s, k]
        if s < 12:
            b, f = divmod(s, 3)
            return self.vm_item(f"buffer_load_dwordx4 v[{r}:{r+3}], v{vL16}, {srd(S_WS)}, s{sS0} offen offset:{1024*f} {self.ld}",
                                pre=f"s_add_u32 s{sS0}, s{36+k}, {3584*b}")
        if s == 12:
            it = self.vm_item(f"buffer_load_dwordx2 v[{r}:{r+1}], v{vL8}, {srd(S_WS)}, s{36+k} offen offset:1024 {self.ld}",
                              pre=f"s_add_u32 s{sS0}, s{36+k}, 3584")
            it.tok = it.post.vm(f"buffer_load_dwordx2 v[{r+2}:{r+3}], v{vL8}, {srd(S_WS)}, s{sS0} offen offset:1024 {self.ld}")
            return it
        return self.vm_item(f"buffer_load_dwordx2 v[{r}:{r+1}], v{vL8}, {srd(S_WS)}, s{sS0} offen offset:1024 {self.ld}",
                            pre=f"s_add_u32 s{sS0}, s{36+k}, {2*3584}")

    def signal_f3(self, S):
        S.wait(self.t_h3st)
        self.flag_store(S, sY)

    def conv(self):
        S = self.S
        CV = 168
        ACC, KVB, HB = 40, 72, 136
        TAIL, order, NS, slot = self.g4_order()
        NPRE = self.o("a4pre", 18)
        S(f"s_lshr_b32 s{sA}, s{sW}, 1")
        S(f"s_lshl_b32 s{sB}, s{sPP}, 1")
        S(f"s_add_u32 s{sA}, s{sA}, s{sB}")
        S(f"s_lshl_b32 s{sA}, s{sA}, 2")
        S(f"s_lshr_b32 s{sB}, s{sJJ}, 2")
        S(f"s_add_u32 s{sA}, s{sA}, s{sB}")
        S(f"s_lshl_b32 s{sA}, s{sA}, 7")
        S(f"s_and_b32 s{sB}, s{sJJ}, 3")
        S(f"s_lshl_b32 s{sB}, s{sB}, 1")
        S(f"s_and_b32 s{sC}, s{sW}, 1")
        S(f"s_add_u32 s{sB}, s{sB}, s{sC}")
        S(f"s_lshl_b32 s{sB}, s{sB}, 2")
        S(f"s_add_u32 s{sA}, s{sA}, s{sB}")
        S(f"s_add_u32 s{sY}, s{sA}, {FL_F3*128}")
        S(f"s_add_u32 s{sX}, s{sU}, {FL_F3*128}")
        S(f"v_and_b32 v{vFA}, 7, v{vLANE}")
        S(f"v_lshlrev_b32 v{vFA}, 2, v{vFA}")
        self.a4_setup(S)
        lb, lj = self.label("noconv"), self.label("join")
        S(f"s_cmp_ge_u32 s{sRB}, 20")
        S(f"s_cbranch_scc1 {lb}")
        prefix = list(S.ops)
        B = Stream()
        B(f"{lb}:")
        w4b = self.w4_items(record=False)[self.w4i:]
        self.put(B, w4b[:8])
        self.signal_f3(B)
        self.put(B, w4b[8:-6])
        tp = self.poll_load(B, vFD, vFA, S_WS, f"s{sX}")
        self.put(B, w4b[-6:])
        self.poll_check(B, tp, vFD, vFA, S_WS, f"s{sX}")
        self.stamp(B, "f3seen")
        self.put(B, [self.a4_item(s, k, slot) for (s, k) in order[:NPRE]])
        marker = Op("; path B", "raw", cost=0)
        resolved = resolve_waits(prefix + [marker] + B.ops)
        idx = [i for i, o in enumerate(resolved) if o is marker][0]
        Bops = [Op(o.text, "resolved") for o in resolved[idx + 1:]]
        S.save_done()
        A1, A2, vH, vKV = 152, 153, 154, 155
        for r in range(4):
            S(f"v_mov_b32 v{156+r}, 0")
        S(f"v_and_b32 v{A1}, 31, v{vLANE}")
        S(f"v_lshlrev_b32 v{A1}, 4, v{A1}")
        S(f"v_lshrrev_b32 v{A2}, 5, v{vLANE}")
        S(f"v_mul_u32_u24 v{A2}, {C_KVB - C_KVA}, v{A2}")
        S(f"v_add3_u32 v{A1}, v{A1}, v{A2}, s95")
        S.ds(f"ds_write_b128 v{A1}, v[156:159] offset:{C_KVA + 4096}")
        S(f"v_and_b32 v{A1}, 3, v{vLANE}")
        S(f"v_lshlrev_b32 v{A1}, 4, v{A1}")
        S(f"v_bfe_u32 v{A2}, v{vLANE}, 2, 1")
        S(f"v_mul_u32_u24 v{A2}, {C_H2 - C_H0}, v{A2}")
        S(f"v_add3_u32 v{A1}, v{A1}, v{A2}, s95")
        S("s_mov_b64 exec, 0xff")
        S.ds(f"ds_write_b128 v{A1}, v[156:159] offset:{C_H0}")
        S("s_mov_b64 exec, -1")
        S(f"v_and_b32 v{A1}, 1, v{vT}")
        S(f"v_cmp_eq_u32 vcc, 1, v{A1}")
        S(f"v_lshlrev_b32 v{vH}, 2, v{vT}")
        S(f"v_lshl_add_u32 v{vH}, v{vQ}, 4, v{vH}")
        S(f"v_mov_b32 v{A1}, {C_H2}")
        S(f"v_mov_b32 v{A2}, {C_H0 + 4}")
        S(f"v_cndmask_b32 v{A1}, v{A1}, v{A2}, vcc")
        S(f"v_add3_u32 v{vH}, v{vH}, v{A1}, s95")
        S(f"v_mov_b32 v{A1}, {C_KVB + 448}")
        S(f"v_mov_b32 v{A2}, {C_KVA + 448}")
        S(f"v_cndmask_b32 v{A1}, v{A1}, v{A2}, vcc")
        S(f"v_lshrrev_b32 v{A2}, 1, v{vT}")
        S(f"v_lshlrev_b32 v{A2}, 6, v{A2}")
        S(f"v_sub_u32 v{A1}, v{A1}, v{A2}")
        S(f"v_lshlrev_b32 v{A2}, 4, v{vQ}")
        S(f"v_add3_u32 v{vKV}, v{A1}, v{A2}, s95")
        S.wait(self.t_cv)
        S(f"v_lshlrev_b32 v{CV+6}, 16, v{CV+4}")
        S(f"v_lshlrev_b32 v{CV+5}, 16, v{CV+5}")
        S(f"v_add_f32 v{CV+6}, v{CV+6}, v{CV+5}")
        S(f"v_and_b32 v{CV+7}, s{sMASK}, v{CV+4}")
        S(f"v_cvt_pk_bf16_f32 v{CV+6}, v{CV+6}, v{CV+7}")
        S(f"v_mov_b32 v{A1}, s95")
        S("s_mov_b64 exec, 1")
        S.ds(f"ds_write_b32 v{A1}, v{CV+6} offset:{C_H0 + 64}")
        S.ds(f"ds_write_b32 v{A1}, v{CV+6} offset:{C_H2 + 60}")
        S.ds(f"ds_write_b16 v{A1}, v156 offset:{C_KVB + 4094}")
        S("s_mov_b64 exec, -1")
        self.stamp(S, "cvready")
        KV = lambda u, b: KVB + 32 * (u & 1) + 4 * b
        HH = lambda pi, e: HB + 8 * (pi & 1) + 4 * e
        tkv, th = {}, {}

        def kvreads(u):
            out = []
            for b in range(8):
                T = Stream()
                tkv[u, b] = T.ds(f"ds_read_b128 v[{KV(u,b)}:{KV(u,b)+3}], v{vKV} offset:{3584 - 512*b + 64*u}")
                out.append(T.ops)
            return out

        def hreads(pi):
            u, pr = divmod(pi, 4)
            out = []
            for e, a in ((0, pr), (1, 7 - pr)):
                for jh in range(2):
                    T = Stream()
                    th.setdefault(pi, []).append(
                        T.ds(f"ds_read_b64 v[{HH(pi,e)+2*jh}:{HH(pi,e)+2*jh+1}], v{vH} offset:{64*u + 512*a + 8*jh}"))
                    out.append(T.ops)
            return out

        for ops in kvreads(0) + hreads(0):
            S.extend(ops)
        w4a = self.w4all[self.w4i:]
        self.t_a4 = {}
        a4 = []
        for (s, k) in order[:NPRE]:
            it = self.a4_item(s, k, slot)
            self.t_a4[s, k] = it.tok
            a4.append(it)
        P_SIG = self.o("cv_sig", 5)
        nw = len(w4a)
        P_POLL = self.o("cv_poll", max(14, (nw - 4 + 1) // 2))
        P_CHK = max(P_POLL + 2, (nw + 1) // 2)
        queue = list(w4a)
        first = set()
        tp = None
        for u in range(8):
            kvn = kvreads(u + 1) if u < 7 else []
            for pr in range(4):
                pi = 4 * u + pr
                if pi == P_SIG:
                    self.signal_f3(S)
                if pi == P_POLL:
                    tp = self.poll_load(S, vFD, vFA, S_WS, f"s{sX}")
                if pi == P_CHK:
                    assert not queue
                    self.poll_check(S, tp, vFD, vFA, S_WS, f"s{sX}")
                    self.stamp(S, "f3seen")
                    queue = a4
                side = (hreads(pi + 1) if pi < 31 else []) + kvn[2 * pr:2 * pr + 2]
                S.wait(th[pi])
                k = 0
                for e, a in ((0, pr), (1, 7 - pr)):
                    for b in range(8 - a):
                        m = a + b
                        if pr == 0 and e == 0 and b == 6:
                            S.wait(tkv[u, 7])
                        it = None
                        if k in (6, 8) + ((7,) if pi >= P_CHK else ()) and queue:
                            it = queue.pop(0)
                            S.extend(it.pre)
                        c = f"v[{ACC+4*m}:{ACC+4*m+3}]" if m in first else "0"
                        first.add(m)
                        S(f"v_mfma_f32_16x16x32_bf16 v[{ACC+4*m}:{ACC+4*m+3}], v[{KV(u,b)}:{KV(u,b)+3}], v[{HH(pi,e)}:{HH(pi,e)+3}], {c}")
                        if it:
                            S.extend(it.post)
                        if k < len(side):
                            S.extend(side[k])
                        k += 1
        self.put(S, queue)
        self.stamp(S, "cvmfma")
        S("s_mov_b32 m0, s95")
        for m in range(8):
            for dw in range(2):
                S(f"v_cvt_pk_bf16_f32 v{KVB+2*m+dw}, v{ACC+4*m+2*dw}, v{ACC+4*m+2*dw+1}")
        for r in range(16):
            S.ds(f"ds_write_addtid_b32 v{KVB+r} offset:{256*r}")
        S(f"v_add_u32 v{A1}, s95, v{vL16}")
        rr = [S.ds(f"ds_read_b128 v[{KVB+16+4*k}:{KVB+19+4*k}], v{A1} offset:{1024*k}") for k in range(4)]
        S(f"v_lshrrev_b32 v{A2}, 5, v{vLANE}")
        S(f"v_lshlrev_b32 v{A2}, 9, v{A2}")
        S(f"v_bfe_u32 v{vH}, v{vLANE}, 2, 2")
        S(f"v_lshl_add_u32 v{A2}, v{vH}, 7, v{A2}")
        S(f"v_bfe_u32 v{vH}, v{vLANE}, 4, 1")
        S(f"v_lshl_add_u32 v{A2}, v{vH}, 6, v{A2}")
        S(f"v_and_b32 v{vH}, 3, v{vLANE}")
        S(f"v_lshl_add_u32 v{A2}, v{vH}, 4, v{A2}")
        S(f"s_add_u32 s94, s92, {WS_YT}")
        S.optbeg()
        self.t_yst = []
        for k in range(4):
            S.wait(rr[k])
            self.t_yst.append(S.vm(f"buffer_store_dwordx4 v[{KVB+16+4*k}:{KVB+19+4*k}], v{A2}, {srd(S_WS)}, s94 offen offset:{1024*k} sc1"))
        S.optend()
        S.wait_all(vm=False, ds=True)
        self.stamp(S, "cvdone")
        S(f"s_branch {lj}")
        S.extend(Bops)
        S(f"{lj}:")
        S.restore_done()
        S.wait_all(vm=False, ds=True)

    def gemm4(self):
        S = self.S
        ACC, RING = 40, 120
        TAIL, order, NS, slot = self.g4_order()
        NPRE = self.o("a4pre", 18)
        AC = lambda k, nu: ACC + 20 * k + 4 * nu
        AR = lambda s, k: RING + 4 * slot[s, k]
        ta = self.t_a4
        li = NPRE
        P = Stream()
        P(f"s_mul_i32 s{sB}, s{sW}, 15360")
        P(f"s_add_u32 s{sB}, s{sB}, {L_RB}")
        P(f"v_add_u32 v247, s{sB}, v{vL16}")
        for k in range(1, 4):
            P(f"s_add_u32 s{sA}, s{sW}, {k}")
            P(f"s_and_b32 s{sA}, s{sA}, 3")
            P(f"s_mul_i32 s{sA}, s{sA}, 15360")
            P(f"s_add_u32 s{sA}, s{sA}, {L_RB + 5120*(k-1)}")
            P(f"v_add_u32 v{247+k}, s{sA}, v{vL16}")
        P(f"v_min_u32 v{vFA}, 19, v{vLANE}")
        P(f"v_lshlrev_b32 v{vFA}, 2, v{vFA}")
        P(f"s_lshl_b32 s{sX}, s{sCB}, 2")
        P(f"s_add_u32 s{sX}, s{sX}, s{sW}")
        P(f"s_lshl_b32 s{sX}, s{sX}, 7")
        P(f"s_add_u32 s{sX}, s{sX}, {FL_Y*128}")
        P(f"v_lshrrev_b32 v251, 3, v{vLANE}")
        P(f"v_and_b32 v252, 7, v{vLANE}")
        P(f"v_lshlrev_b32 v252, 4, v252")
        P(f"v_lshl_add_u32 v251, v251, 12, v252")
        P(f"s_mul_i32 s{sY}, s{sCB}, 80")
        P(f"s_mul_i32 s{sB}, s{sW}, 20")
        P(f"s_add_u32 s{sY}, s{sY}, s{sB}")
        P(f"s_lshl_b32 s{sY}, s{sY}, 12")
        P(f"s_lshl_b32 s{sB}, s{sRB}, 7")
        P(f"s_add_u32 s{sY}, s{sY}, s{sB}")
        P(f"s_add_u32 s{sY}, s{sY}, {WS_YT}")
        P(f"s_mul_i32 s{sS4}, s{sW}, 2560")
        P(f"s_lshl_b32 s{sA}, s{sRB}, 2")
        P(f"s_add_u32 s{sA}, s{sA}, s{sW}")
        P(f"s_mul_i32 s{sB}, s{sA}, 3277")
        P(f"s_lshr_b32 s{sB}, s{sB}, 16")
        P(f"s_mul_i32 s{sC}, s{sB}, 20")
        P(f"s_sub_u32 s{sA}, s{sA}, s{sC}")
        P(f"s_lshl_b32 s{sA}, s{sA}, 2")
        P(f"s_lshl_b32 s{sC}, s{sCB}, 2")
        P(f"s_add_u32 s{sB}, s{sB}, s{sC}")
        P(f"s_lshl_b32 s{sB}, s{sB}, 7")
        P(f"s_add_u32 s{sA}, s{sA}, s{sB}")
        P(f"s_add_u32 s{sS3}, s{sA}, {FL_Y*128}")
        setup = P.ops
        first = set()
        t_fy = None
        t_y = []
        wr = []
        YS, FYI, FYC = self.o("g4ys", 12), self.o("g4fyi", 34), self.o("g4fyc", 42)
        self.stamp(S, "g4start")
        for i, (s, k) in enumerate(order):
            if i == YS:
                ny = self.label("noy")
                S(f"s_cmp_ge_u32 s{sRB}, 20")
                S(f"s_cbranch_scc1 {ny}")
                S.optbeg()
                S.wait(self.t_yst)
                self.flag_store(S, sS3)
                S.optend()
                S(f"{ny}:")
            if i == FYI:
                t_fy = self.poll_load(S, 253, vFA, S_WS, f"s{sX}")
            if i == FYC:
                self.poll_check(S, t_fy, 253, vFA, S_WS, f"s{sX}")
                for j in range(3):
                    it = self.dma_item(251, S_WS, f"s{sY}", sS4, L_YT + 1024 * j, flags="sc1", mask="s_mov_b32 exec_hi, 0" if j == 2 else None,
                                       pre=f"s_add_u32 s{sY}, s{sY}, {8*4096}" if j else None)
                    t_y.append(it.tok)
                    self.put(S, [it])
            S.wait(ta[s, k], self.t_w4[5 * s + 4])
            for nu in range(5):
                phi = 5 * s + nu
                kk, r = self.w4_reg(phi)
                it = None
                if nu == 1 and li < len(order) and li - i <= NS - 1:
                    it = self.a4_item(*order[li], slot)
                    ta[order[li]] = it.tok
                    li += 1
                    S.extend(it.pre)
                c = f"v[{AC(k,nu)}:{AC(k,nu)+3}]" if (k, nu) in first else "0"
                first.add((k, nu))
                if s < 13:
                    S(f"v_mfma_f32_16x16x32_bf16 v[{AC(k,nu)}:{AC(k,nu)+3}], {kk}[{r}:{r+3}], v[{AR(s,k)}:{AR(s,k)+3}], {c}")
                else:
                    S(f"v_mfma_f32_16x16x16_bf16 v[{AC(k,nu)}:{AC(k,nu)+3}], {kk}[{r}:{r+1}], v[{AR(s,k)}:{AR(s,k)+1}], {c}")
                if it:
                    S.extend(it.post)
                elif setup:
                    S.extend(setup[:2])
                    setup = setup[2:]
                if wr and nu in (2, 4) and s >= 14 - TAIL:
                    S.extend(wr.pop(0))
            if s == 13 and k != 0:
                for nu in range(5):
                    T = Stream()
                    T.ds(f"ds_write_b128 v{247+k}, v[{AC(k,nu)}:{AC(k,nu)+3}] offset:{1024*nu}")
                    wr.append(T.ops)
            if i == YS - 1:
                assert not setup
        assert li == len(order)
        for g in wr:
            S.extend(g)
        self.stamp(S, "g4mfma")
        Y, XU, X1U, U = 60, 180, 200, 70
        S(f"v_lshrrev_b32 v248, 2, v{vLANE}")
        S(f"v_lshlrev_b32 v248, 7, v248")
        S(f"v_and_b32 v249, 3, v{vLANE}")
        S(f"v_lshl_add_u32 v248, v249, 3, v248")
        S(f"s_lshl_b32 s{sA}, s{sW}, 5")
        S(f"s_add_u32 s{sA}, s{sA}, {L_YT}")
        S(f"v_add_u32 v248, s{sA}, v248")
        S.wait(t_y)
        S.wait_all(vm=False, ds=True)
        S.barrier()
        rd = {}
        for j in range(3):
            for nu in range(5):
                rd[j, nu] = S.ds(f"ds_read_b128 v[{RING+20*j+4*nu}:{RING+20*j+4*nu+3}], v247 offset:{5120*j + 1024*nu}")
        ty = [S.ds(f"ds_read_b64_tr_b16 v[{Y+2*tau}:{Y+2*tau+1}], v248 offset:{2048*tau}") for tau in range(5)]
        for p in range(10):
            S(f"v_lshlrev_b32 v{XU+2*p}, 16, v{vXT+p}")
            S(f"v_and_b32 v{XU+2*p+1}, s{sMASK}, v{vXT+p}")
            S(f"v_lshlrev_b32 v{X1U+2*p}, 16, v{vX1+p}")
            S(f"v_and_b32 v{X1U+2*p+1}, s{sMASK}, v{vX1+p}")
        for p in range(10):
            S(f"v_pk_add_f32 v[{ACC+2*p}:{ACC+2*p+1}], v[{ACC+2*p}:{ACC+2*p+1}], v[{X1U+2*p}:{X1U+2*p+1}]")
        for j in range(3):
            S.wait([rd[j, nu] for nu in range(5)])
            for p in range(10):
                S(f"v_pk_add_f32 v[{ACC+2*p}:{ACC+2*p+1}], v[{ACC+2*p}:{ACC+2*p+1}], v[{RING+20*j+2*p}:{RING+20*j+2*p+1}]")
        S.wait(ty)
        for p in range(10):
            S(f"v_pk_fma_f32 v[{X1U+2*p}:{X1U+2*p+1}], v[{XU+2*p}:{XU+2*p+1}], v[{vMR}:{vMR+1}], v[{vMR}:{vMR+1}] op_sel:[0,1,0] op_sel_hi:[1,1,0]")
            S(f"v_lshlrev_b32 v{U+2*p}, 16, v{Y+p}")
            S(f"v_and_b32 v{U+2*p+1}, s{sMASK}, v{Y+p}")
        for p in range(10):
            S(f"v_pk_mul_f32 v[{U+2*p}:{U+2*p+1}], v[{U+2*p}:{U+2*p+1}], v[{X1U+2*p}:{X1U+2*p+1}]")
        T0 = RING
        for p in range(10):
            S(f"v_pk_mul_f32 v[{T0+2*p}:{T0+2*p+1}], v[{ACC+2*p}:{ACC+2*p+1}], s[{sNL2E}:{sNL2E+1}] op_sel_hi:[1,0]")
        for p in range(20):
            S(f"v_exp_f32 v{T0+p}, v{T0+p}")
        for p in range(10):
            S(f"v_pk_add_f32 v[{T0+2*p}:{T0+2*p+1}], v[{T0+2*p}:{T0+2*p+1}], 1.0 op_sel_hi:[1,0]")
        for p in range(20):
            S(f"v_rcp_f32 v{T0+p}, v{T0+p}")
        for p in range(10):
            S(f"v_pk_mul_f32 v[{T0+2*p}:{T0+2*p+1}], v[{T0+2*p}:{T0+2*p+1}], v[{ACC+2*p}:{ACC+2*p+1}]")
        for p in range(10):
            S(f"v_pk_fma_f32 v[{T0+2*p}:{T0+2*p+1}], v[{T0+2*p}:{T0+2*p+1}], v[{U+2*p}:{U+2*p+1}], v[{XU+2*p}:{XU+2*p+1}]")
        O = 100
        S(f"v_mul_u32_u24 v248, 160, v{vT}")
        S(f"v_lshl_add_u32 v248, v{vQ}, 3, v248")
        S(f"s_add_u32 s{sS4}, s{sS4}, {L_OUT}")
        S(f"v_add_u32 v248, s{sS4}, v248")
        S(f"v_add_u32 v249, s{sS4}, v{vL16}")
        for tau in range(5):
            for e in range(2):
                p = 2 * tau + e
                S(f"v_cvt_pk_bf16_f32 v{O+p}, v{T0+2*p}, v{T0+2*p+1}")
            S.ds(f"ds_write_b64 v248, v[{O+2*tau}:{O+2*tau+1}] offset:{32*tau}")
        S(f"s_mul_i32 s{sA}, s{sT0}, 1280")
        S(f"s_add_u32 s{sA}, s{sA}, s{sCB160}")
        rr = []
        for j in range(3):
            if j == 2:
                S("s_mov_b32 exec_hi, 0")
            rr.append(S.ds(f"ds_read_b128 v[{140+4*j}:{143+4*j}], v249 offset:{1024*j}"))
        S("s_mov_b64 exec, -1")
        for j in range(3):
            S.wait(rr[j])
            if j == 2:
                S("s_mov_b32 exec_hi, 0")
            S.vm(f"buffer_store_dwordx4 v[{140+4*j}:{143+4*j}], v{vNAT+j}, {srd(S_OUT)}, s{sA} offen")
        S("s_mov_b64 exec, -1")
        self.stamp(S, "end")

    def finish(self):
        S = self.S
        if self.diag:
            S.wait_all()
            S("s_memrealtime s[90:91]")
            S.wait_all(vm=False, ds=True)
            S("v_writelane_b32 v39, s88, 30")
            S("v_writelane_b32 v39, s90, 31")
            S(f"s_lshl_b32 s{sA}, s{sRB}, 3")
            S(f"s_add_u32 s{sA}, s{sA}, s{sCB}")
            S(f"s_lshl_b32 s{sA}, s{sA}, 2")
            S(f"s_add_u32 s{sA}, s{sA}, s{sW}")
            S(f"s_lshl_b32 s{sA}, s{sA}, 7")
            S(f"s_add_u32 s{sA}, s{sA}, {WS_STAMP}")
            S(f"v_lshlrev_b32 v40, 2, v{vLANE}")
            S("s_mov_b32 exec_hi, 0")
            S.vm(f"buffer_store_dword v39, v40, {srd(S_WS)}, s{sA} offen")
            S.wait_all()
        S("L_end:")
        S("s_endpgm")

    def build(self):
        phases = [self.prologue, self.gemm1, self.window1, self.gemm2, self.gemm3, self.conv, self.gemm4]
        for ph in phases:
            self.S.comment("==== " + ph.__name__)
            ph()
            if self.stop == ph.__name__:
                self.S.wait_all()
                break
        self.finish()
        ops = resolve_waits(self.S.ops)
        ops, npad = pad_hazards(ops)
        return ops, npad


HEADER = """; Fused persistent kernel: x + (LN(x) * H3conv(k,v)) * silu(S-MLP mixer(LN(x)))
; @launch grid=(256,1,1) block=(256,1,1) lds=163840
.amdgcn_target "amdgcn-amd-amdhsa--gfx950"
.text
.globl {name}
.p2align 8
.type {name},@function
{name}:
"""
FOOTER = """
.fill 4096, 4, 0xbf800000
s_endpgm
.section .rodata,"a"
.p2align 6
.amdhsa_kernel {name}
  .amdhsa_next_free_vgpr 512
  .amdhsa_next_free_sgpr 102
  .amdhsa_accum_offset 256
  .amdhsa_group_segment_fixed_size 0
  .amdhsa_kernarg_size 112
  .amdhsa_user_sgpr_count 2
  .amdhsa_user_sgpr_kernarg_segment_ptr 1
  .amdhsa_system_sgpr_workgroup_id_x 1
  .amdhsa_float_denorm_mode_32 3
.end_amdhsa_kernel
"""


def generate(**kw):
    g = Gen(**kw)
    ops, npad = g.build()
    txt = HEADER.format(name=NAME) + render(ops) + FOOTER.format(name=NAME)
    return txt, g, npad


if __name__ == "__main__":
    import argparse
    ap = argparse.ArgumentParser()
    ap.add_argument("-o", default="recurrent_scan__ssm_conv_h3__mixer_s_mlp__prompt.s")
    ap.add_argument("--diag", action="store_true")
    ap.add_argument("--stop", default=None)
    ap.add_argument("--opt", default="")
    a = ap.parse_args()
    txt, g, npad = generate(diag=a.diag, stop=a.stop, **eval("dict(%s)" % a.opt))
    open(a.o, "w").write(txt)
    print("written", a.o, "lines", txt.count("\n"), "nop pads", npad, "stamps", g.stamp_names)
```

```python
import sys, os, struct
sys.path.insert(0, os.path.dirname(os.path.abspath(__file__)))
from asmlib import *

NAME = "recurrent_scan__ssm_conv_h3__mixer_s_mlp__prompt_kernel"

WS_FLAGS = 0
WS_H = 0x10000
WS_ST1 = 0x290000
WS_X1 = 0x2B0000
WS_PS = 0x530000
WS_H3 = 0x550000
WS_KVR = 0xC50000
WS_YT = 0xEE0000
WS_W4P = 0x1160000
WS_STAMP = 0x1390000
WS_SIZE = 0x1400000
FL_F1, FL_F2, FL_F3, FL_KV, FL_P, FL_Y = 0, 128, 256, 384, 416, 448
NINIT = 16

LDS_SIZE = 163840
L_W1 = 0
L_XR = 102400
XR_W = 12288
O_CS1 = 11520
L_KVT = 151552
L_W2 = 0
L_W3 = 0
L_CS3P = 143360
L_CS3F = 145408
CONV_W = 17920
C_H0, C_H2, C_KVA, C_KVB = 0, 4224, 8448, 13088
L_RB = 73728
L_YT = 143360
L_OUT = 153600

S_X, S_W, S_WS, S_K, S_V, S_M, S_OUT, S_DBG = 4, 8, 12, 16, 20, 24, 28, 32
P_Q, P_K, P_V, P_SK, P_SSMK, P_SSMD, P_W1, P_W2, P_W3, P_W4, P_OUT, P_DBG, P_WS = 36, 38, 40, 42, 44, 46, 50, 52, 54, 56, 58, 60, 62
sW, sRB, sCB, sT0 = 64, 65, 66, 67
sGC = 68
sNL2E, sINV, sEPS, sMASK, sONES = 70, 71, 72, 73, 74
sCB160 = 75
sA, sB, sC, sD = 76, 77, 78, 79
sE, sF, sG, sH = 48, 49, 3, 2
sR5, sR4, sCI = 80, 81, 81
sS0, sS1, sS2, sS3, sS4, sS5 = 82, 83, 84, 85, 86, 87
sP0 = 92
sJJ, sPP, sU, sW4 = 96, 97, 98, 99
sX, sY = 100, 101

vLANE, vL16, vT, vL8 = 0, 1, 2, 3
vNAT = 4
vTR = 9
vXT = 12
vX1 = 22
vMR = 32
vONE = 34
vFA = 35
vFD = 36
vQ = 37
vZERO = 38
vH, vKV = 254, 255


def srd(reg):
    return f"s[{reg}:{reg+3}]"


def f2u(x):
    return struct.unpack("<I", struct.pack("<f", x))[0]


class Item:
    def __init__(self):
        self.pre = Stream()
        self.post = Stream()

    def flat(self):
        return self.pre.ops + self.post.ops


def tcost(op):
    if op.text.startswith("v_mfma"):
        return 16
    return op.cost


def sprinkle(main, items, start, every):
    out = []
    acc, nxt, gi, guard = 0, start, 0, 0
    ops = main.ops
    for i, op in enumerate(ops):
        t = op.text
        plain = op.kind == "i" and not t.startswith("s_") and not t.startswith("v_cmp") and guard == 0
        if plain and gi < len(items) and acc >= nxt:
            it = items[gi]
            gi += 1
            out.extend(it.pre.ops)
            out.append(op)
            out.extend(it.post.ops)
            acc += tcost(op) + sum(tcost(o) for o in it.flat())
            nxt += every
            continue
        if op.kind == "optbeg":
            guard += 1
        if op.kind == "optend":
            guard -= 1
        if t.startswith("s_mov_b64 exec") or t.startswith("s_mov_b32 exec_lo") or t.startswith("s_mov_b32 exec_hi, 0"):
            if t == "s_mov_b64 exec, -1":
                guard -= 1
            elif not t.startswith("s_mov_b32 exec_hi, 0x"):
                guard += 1
        out.append(op)
        acc += tcost(op)
    s = Stream()
    s.ops = out
    return s, items[gi:]


class Gen:
    def __init__(self, diag=False, stop=None, ld="sc1", mapping="4x8", rot=False, **opt):
        self.diag = diag
        self.stop = stop
        self.S = Stream()
        self.nstamp = 0
        self.nlabel = 0
        self.ld = ld
        self.mapping = mapping
        self.rot = rot
        self.opt = opt
        self.stamp_names = []

    def o(self, name, default):
        return self.opt.get(name, default)

    def label(self, base):
        self.nlabel += 1
        return f"L_{base}_{self.nlabel}"

    def stamp(self, S, name):
        if not self.diag or name in self.o("nostamp", ()):
            return
        if name in self.stamp_names:
            k = self.stamp_names.index(name)
        else:
            k = self.nstamp
            self.nstamp += 1
            self.stamp_names.append(name)
        S("s_memrealtime s[90:91]" if self.o("rt", 0) else "s_memtime s[90:91]")
        S.wait_all(vm=False, ds=True)
        S(f"v_writelane_b32 v39, s90, {k}")

    def mksrd(self, S, reg, ptr, size):
        S(f"s_mov_b64 s[{reg}:{reg+1}], s[{ptr}:{ptr+1}]")
        S(f"s_mov_b32 s{reg+2}, {size}")
        S(f"s_mov_b32 s{reg+3}, 0x20000")

    def ldsaddr(self, basereg, off):
        k = off // 65536
        return f"v{basereg+k} offset:{off - 65536*k}"

    def dma_item(self, vaddr, sr, soff, m0reg, m0c, off=0, flags="", mask=None, pre=None):
        it = Item()
        if pre:
            it.pre(pre)
        it.pre(f"s_add_u32 m0, s{m0reg}, {m0c}")
        o = f" offset:{off}" if off else ""
        fl = f" {flags}" if flags else ""
        if mask:
            it.post(mask)
        it.tok = it.post.vm(f"buffer_load_dwordx4 v{vaddr}, {srd(sr)}, {soff} offen{o}{fl} lds")
        if mask:
            it.post("s_mov_b64 exec, -1")
        return it

    def vm_item(self, text, pre=None, mask=None):
        it = Item()
        if pre:
            it.pre(pre)
        if mask:
            it.post(mask)
        it.tok = it.post.vm(text)
        if mask:
            it.post("s_mov_b64 exec, -1")
        return it

    @staticmethod
    def put(S, items):
        for it in items:
            S.extend(it.flat())

    def divpat(self, S, dst, j, div, stride, tmp, dst2=None):
        magic = (1 << 16) // div + 1
        assert all(((p * magic) >> 16) == p // div for p in range(64 * j, 64 * j + 64))
        a, b, c = tmp, tmp + 1, tmp + 2
        S(f"v_add_u32 v{a}, {64*j}, v{vLANE}")
        S(f"v_mul_u32_u24 v{b}, {magic}, v{a}")
        S(f"v_lshrrev_b32 v{b}, 16, v{b}")
        S(f"v_mul_u32_u24 v{c}, {div}, v{b}")
        S(f"v_sub_u32 v{a}, v{a}, v{c}")
        S(f"v_lshlrev_b32 v{a}, 4, v{a}")
        S(f"v_mul_u32_u24 v{c}, {stride}, v{b}")
        S(f"v_add_u32 v{dst}, v{c}, v{a}")
        if dst2 is not None:
            S(f"v_bfe_u32 v{c}, v{b}, 2, 2")
            S(f"v_lshlrev_b32 v{c}, 3, v{c}")
            S(f"v_and_b32 v{dst2}, 3, v{b}")
            S(f"v_add_u32 v{c}, v{c}, v{dst2}")
            S(f"v_lshrrev_b32 v{b}, 4, v{b}")
            S(f"v_lshl_add_u32 v{c}, v{b}, 2, v{c}")
            S(f"v_mul_u32_u24 v{c}, {stride}, v{c}")
            S(f"v_add_u32 v{dst2}, v{c}, v{a}")

    def qreduce2(self, S, a, b, t):
        S(f"v_permlane16_swap_b32 v{a}, v{b}")
        S(f"v_add_f32 v{a}, v{a}, v{b}")
        S(f"v_mov_b32 v{t}, v{a}")
        S(f"v_permlane32_swap_b32 v{a}, v{t}")
        S(f"v_add_f32 v{a}, v{a}, v{t}")
        S(f"v_mov_b32 v{b}, v{a}")
        S(f"v_permlane16_swap_b32 v{a}, v{b}")

    def gelu_pairs(self, S, pairs, tmp, KA, KB, width=4):
        for i in range(0, len(pairs), width):
            ch = pairs[i:i + width]
            T = [tmp + 2 * k for k in range(len(ch))]
            for (z, d), t in zip(ch, T):
                S(f"v_pk_mul_f32 v[{t}:{t+1}], v[{z}:{z+1}], v[{z}:{z+1}]")
            for (z, d), t in zip(ch, T):
                S(f"v_pk_fma_f32 v[{t}:{t+1}], v[{t}:{t+1}], v[{KA}:{KA+1}], v[{KA}:{KA+1}] op_sel:[0,0,1] op_sel_hi:[1,0,1]")
            for (z, d), t in zip(ch, T):
                S(f"v_pk_mul_f32 v[{t}:{t+1}], v[{t}:{t+1}], v[{z}:{z+1}]")
            for (z, d), t in zip(ch, T):
                S(f"v_exp_f32 v{t}, v{t}")
                S(f"v_exp_f32 v{t+1}, v{t+1}")
            for (z, d), t in zip(ch, T):
                S(f"v_pk_fma_f32 v[{t}:{t+1}], v[{t}:{t+1}], v[{KB}:{KB+1}], v[{KB}:{KB+1}] op_sel:[0,1,1] op_sel_hi:[1,1,1]")
            for (z, d), t in zip(ch, T):
                S(f"v_rcp_f32 v{t}, v{t}")
                S(f"v_rcp_f32 v{t+1}, v{t+1}")
            for (z, d), t in zip(ch, T):
                S(f"v_pk_mul_f32 v[{t}:{t+1}], v[{t}:{t+1}], v[{z}:{z+1}]")
            for (z, d), t in zip(ch, T):
                S(f"v_cvt_pk_bf16_f32 v{d}, v{t}, v{t+1}")

    def gelu_consts(self, S, r, KA):
        S(f"v_mul_f32 v{KA}, v{r}, v{r}")
        S(f"v_mul_f32 v{KA+1}, s{sGC+1}, v{r}")
        S(f"v_mul_f32 v{KA}, v{KA}, v{r}")
        S(f"v_mul_f32 v{KA}, s{sGC}, v{KA}")

    def poll_load(self, S, vdst, vaddr, sr, soff="0"):
        return S.vm(f"buffer_load_dword v{vdst}, v{vaddr}, {srd(sr)}, {soff} offen sc1")

    def poll_check(self, S, tok, vdst, vaddr, sr, soff="0", val=1, cmp="ne"):
        lp, dn = self.label("spin"), self.label("ok")
        S.wait(tok)
        S(f"v_cmp_{cmp}_u32 vcc, {val}, v{vdst}")
        S(f"s_cbranch_vccz {dn}")
        S.optbeg()
        S(f"s_mov_b32 s{sD}, 0")
        S(f"{lp}:")
        self.poll_load(S, vdst, vaddr, sr, soff)
        S(f"s_add_u32 s{sD}, s{sD}, 1")
        S(f"s_cmp_gt_u32 s{sD}, 400000")
        S(f"s_cbranch_scc1 {dn}")
        S.wait_all(vm=True, ds=False)
        S(f"v_cmp_{cmp}_u32 vcc, {val}, v{vdst}")
        S(f"s_cbranch_vccnz {lp}")
        S.optend()
        S(f"{dn}:")

    def flag_store(self, S, sreg):
        S("s_mov_b64 exec, 1")
        t = S.vm(f"buffer_store_dword v{vONE}, v{vZERO}, {srd(S_WS)}, s{sreg} offen sc1")
        S("s_mov_b64 exec, -1")
        return t

    def mod5(self, S, dst, src, add, tmp):
        S(f"s_add_u32 s{dst}, s{src}, {add}")
        S(f"s_cmp_ge_u32 s{dst}, 5")
        S(f"s_cselect_b32 s{tmp}, 5, 0")
        S(f"s_sub_u32 s{dst}, s{dst}, s{tmp}")

    def prologue(self):
        S = self.S
        S("s_cmp_ge_u32 s2, 256")
        S("s_cbranch_scc1 L_end")
        S("s_load_dwordx16 s[36:51], s[0:1], 0")
        S("s_load_dwordx8 s[52:59], s[0:1], 64")
        S("s_load_dwordx4 s[60:63], s[0:1], 96")
        if self.diag:
            S("s_memrealtime s[88:89]")
            S("v_mov_b32 v39, 0")
        S(f"v_lshrrev_b32 v190, 6, v0")
        S(f"v_and_b32 v{vLANE}, 63, v0")
        S(f"v_readfirstlane_b32 s{sW}, v190")
        S("s_getpc_b64 s[82:83]")
        S(f"s_lshr_b32 s{sB}, s2, 3")
        S(f"s_mul_i32 s{sA}, s{sB}, 11")
        S(f"s_mul_i32 s{sC}, s{sW}, 3")
        S(f"s_add_u32 s{sA}, s{sA}, s{sC}")
        S(f"v_add_u32 v190, s{sA}, v{vLANE}")
        S(f"v_lshlrev_b32 v190, 7, v190")
        S("s_mov_b64 exec, 7")
        S.vm("global_load_dword v191, v190, s[82:83]")
        S("s_mov_b64 exec, -1")
        S(f"s_and_b32 s{sA}, s2, 7")
        if self.mapping == "4x8":
            S(f"s_and_b32 s{sCB}, s{sB}, 7")
            S(f"s_lshr_b32 s{sB}, s{sB}, 3")
            S(f"s_lshl_b32 s{sA}, s{sA}, 2")
            S(f"s_add_u32 s{sRB}, s{sA}, s{sB}")
        else:
            S(f"s_and_b32 s{sCB}, s{sB}, 3")
            S(f"s_and_b32 s{sC}, s{sA}, 1")
            S(f"s_lshl_b32 s{sC}, s{sC}, 2")
            S(f"s_add_u32 s{sCB}, s{sCB}, s{sC}")
            S(f"s_lshr_b32 s{sB}, s{sB}, 2")
            S(f"s_lshr_b32 s{sA}, s{sA}, 1")
            S(f"s_lshl_b32 s{sA}, s{sA}, 3")
            S(f"s_add_u32 s{sRB}, s{sA}, s{sB}")
        S(f"v_and_b32 v{vT}, 15, v{vLANE}")
        S(f"v_lshrrev_b32 v{vQ}, 4, v{vLANE}")
        S(f"s_lshr_b32 s{sA}, s{sCB}, 2")
        S(f"s_add_u32 s{sA}, s{sA}, 1")
        S(f"s_sub_u32 s{sB}, 0, s{sA}")
        S(f"s_bitcmp1_b32 s{sCB}, 1")
        S(f"s_cselect_b32 s{sA}, s{sA}, s{sB}")
        S(f"s_lshl_b32 s{sT0}, s{sRB}, 6")
        S(f"s_lshl_b32 s{sB}, s{sW}, 4")
        S(f"s_add_u32 s{sT0}, s{sT0}, s{sB}")
        S(f"s_add_u32 s{sA}, s{sA}, s{sT0}")
        S(f"v_add_u32 v164, s{sA}, v{vQ}")
        S(f"v_mul_i32_i24 v164, 1280, v164")
        S(f"v_xor_b32 v165, v{vT}, v{vQ}")
        S(f"v_lshlrev_b32 v165, 4, v165")
        S(f"v_add_u32 v160, v164, v165")
        for i in range(1, 4):
            S(f"v_xor_b32 v{160+i}, {64*i}, v160")
            S(f"v_add_u32 v{160+i}, {5120*i}, v{160+i}")
        S(f"s_mul_i32 s{sY}, s{sW}, {XR_W}")
        S(f"s_add_u32 s{sY}, s{sY}, {L_XR}")
        S(f"s_mul_i32 s{sCB160}, s{sCB}, 160")
        if self.o("rot1", 1):
            S(f"s_add_u32 s{sA}, s{sRB}, s{sCB}")
            S(f"s_mul_i32 s{sB}, s{sA}, 52429")
            S(f"s_lshr_b32 s{sB}, s{sB}, 18")
            S(f"s_mul_i32 s{sB}, s{sB}, 5")
            S(f"s_sub_u32 s{sR5}, s{sA}, s{sB}")
        else:
            S(f"s_mov_b32 s{sR5}, 0")
        if self.o("cimix", 1):
            S(f"s_lshr_b32 s{sA}, s{sRB}, 3")
            S(f"s_and_b32 s{sB}, s{sRB}, 7")
            S(f"s_lshl_b32 s{sC}, s{sB}, 2")
            S(f"s_lshr_b32 s{sC}, 0x76435210, s{sC}")
            S(f"s_and_b32 s{sC}, s{sC}, 15")
            S(f"s_mul_i32 s{sB}, s{sA}, 5")
            S(f"s_add_u32 s{sB}, s{sB}, s{sC}")
            S(f"s_mul_i32 s{sA}, s{sA}, 3")
            S(f"s_add_u32 s{sA}, s{sA}, s{sC}")
            S(f"s_add_u32 s{sA}, s{sA}, 15")
            S(f"s_cmp_lt_u32 s{sC}, 5")
            S(f"s_cselect_b32 s{sCI}, s{sB}, s{sA}")
        else:
            S(f"s_mov_b32 s{sCI}, s{sRB}")
        S(f"v_lshlrev_b32 v{vL16}, 4, v{vLANE}")
        S(f"s_cmp_eq_u32 s{sW}, 3")
        S(f"s_cselect_b32 s{sG}, s2, {NINIT}")
        S("s_waitcnt lgkmcnt(0)")
        self.stamp(S, "kernarg")
        self.mksrd(S, S_X, P_Q, 2621440)
        self.t_x, self.t_w1 = {}, {}
        self.xitems = {g: self.x_group(g) for g in range(5)}
        self.w1items = {st: self.w1_stage(st) for st in range(5)}
        self.put(S, self.xitems[0])
        self.mksrd(S, S_W, P_W1, 819200)
        for j in range(5):
            self.divpat(S, vNAT + j, j, 10, 1280, 180, dst2=168 + j)
            self.put(S, [self.w1items[0][j]])
        self.mksrd(S, S_WS, P_WS, WS_SIZE)
        self.mksrd(S, S_DBG, P_DBG, 256)
        skip = self.label("noinit")
        S(f"s_cmp_ge_u32 s{sG}, {NINIT}")
        S(f"s_cbranch_scc1 {skip}")
        S.optbeg()
        for r in range(4):
            S(f"v_mov_b32 v{192+r}, 0")
        S(f"s_lshl_b32 s{sB}, s{sG}, 12")
        self.t_init = [S.vm(f"buffer_store_dwordx4 v[192:195], v{vL16}, {srd(S_WS)}, s{sB} offen offset:{1024*i} sc1") for i in range(4)]
        S.optend()
        S(f"{skip}:")
        S(f"v_lshlrev_b32 v196, 7, v{vLANE}")
        if self.o("touch", 1):
            self.mksrd(S, S_M, P_W2, 819200)
            S(f"s_mul_i32 s{sA}, s2, {25*128}")
            S(f"s_mul_i32 s{sB}, s{sW}, {7*128}")
            S(f"s_add_u32 s{sA}, s{sA}, s{sB}")
            S("s_mov_b64 exec, 0x7f")
            S.vm(f"buffer_load_dword v197, v196, {srd(S_M)}, s{sA} offen")
            S("s_mov_b64 exec, -1")
            S(f"s_mul_i32 s{sX}, s2, {68*128}")
            S(f"s_mul_i32 s{sB}, s{sW}, {17*128}")
            S(f"s_add_u32 s{sX}, s{sX}, s{sB}")
        self.mksrd(S, S_K, P_K, 2621440)
        self.mksrd(S, S_V, P_V, 2621440)
        EX = Stream()
        if self.o("touch", 1) and self.o("w3del", 0):
            lab = self.label("now3")
            EX(f"s_cmp_lt_u32 s{sRB}, 24")
            EX(f"s_cbranch_scc1 {lab}")
            EX.optbeg()
            self.mksrd(EX, S_M, P_W3, 2211840)
            EX(f"s_sub_u32 s{sA}, s{sRB}, 24")
            EX(f"s_lshl_b32 s{sA}, s{sA}, 3")
            EX(f"s_add_u32 s{sA}, s{sA}, s{sCB}")
            EX(f"s_lshl_b32 s{sA}, s{sA}, 2")
            EX(f"s_add_u32 s{sA}, s{sA}, s{sW}")
            EX(f"s_mul_i32 s{sA}, s{sA}, {68*128}")
            EX.vm(f"buffer_load_dword v197, v196, {srd(S_M)}, s{sA} offen")
            EX(f"s_add_u32 s{sA}, s{sA}, {64*128}")
            EX("s_mov_b64 exec, 15")
            EX.vm(f"buffer_load_dword v197, v196, {srd(S_M)}, s{sA} offen")
            EX("s_mov_b64 exec, -1")
            EX.optend()
            EX(f"{lab}:")
        elif self.o("touch", 1):
            self.mksrd(EX, S_M, P_W3, 2211840)
            EX("s_mov_b64 exec, 0x1ffff")
            EX.vm(f"buffer_load_dword v197, v196, {srd(S_M)}, s{sX} offen")
            EX("s_mov_b64 exec, -1")
        self.mksrd(EX, S_M, P_SK, 5120)
        EX(f"s_mul_i32 s{sA}, s{sCB}, 640")
        EX(f"v_lshlrev_b32 v198, 3, v{vT}")
        self.t_sk = [EX.vm(f"buffer_load_dwordx2 v[{200+2*tau}:{201+2*tau}], v198, {srd(S_M)}, s{sA} offen offset:{128*tau}") for tau in range(5)]
        self.pp_load(EX)
        if self.o("ssmpos", 8) == "ex":
            EX.extend(self.ssm_touch().flat())
        self.extras = EX
        self.kvx_items()
        if self.o("exstage", 2) == -1:
            S.extend(EX)
        S(f"v_lshlrev_b32 v{vL8}, 3, v{vLANE}")
        S(f"v_add_u32 v{vL8}, 2048, v{vL8}")
        S(f"v_lshrrev_b32 v180, 2, v{vLANE}")
        S(f"v_mul_u32_u24 v180, 160, v180")
        S(f"v_and_b32 v181, 3, v{vLANE}")
        S(f"v_lshl_add_u32 v{vTR}, v181, 3, v180")
        S(f"v_add_u32 v{vTR+1}, 0x10000, v{vTR}")
        S(f"v_add_u32 v{vTR+2}, 0x20000, v{vTR}")
        S(f"v_lshrrev_b32 v180, 2, v{vT}")
        S(f"v_lshlrev_b32 v180, 10, v180")
        S(f"v_and_b32 v181, 3, v{vT}")
        S(f"v_lshl_add_u32 v180, v181, 8, v180")
        S(f"v_add_u32 v180, s{sY}, v180")
        S(f"v_xor_b32 v181, v{vT}, v{vQ}")
        S(f"v_lshl_add_u32 v164, v181, 4, v180")
        for e in range(1, 4):
            S(f"v_xor_b32 v{164+e}, {64*e}, v164")
        C1 = -2.0 * 1.4426950408889634 * 0.7978845608028654
        S(f"s_mov_b32 s{sGC}, {f2u(C1*0.044715):#x}")
        S(f"s_mov_b32 s{sGC+1}, {f2u(C1):#x}")
        S(f"s_mov_b32 s{sNL2E}, {f2u(-1.4426950408889634):#x}")
        S(f"s_mov_b32 s{sINV}, {f2u(1.0/640):#x}")
        S(f"s_mov_b32 s{sEPS}, {f2u(1e-5):#x}")
        S(f"s_mov_b32 s{sMASK}, 0xffff0000")
        S(f"s_mov_b32 s{sONES}, 0x3f803f80")
        S(f"v_mov_b32 v{vONE}, 1")
        S(f"v_mov_b32 v{vZERO}, 0")
        for r in range(4):
            S(f"v_mov_b32 v{176+r}, s{sONES}")
        for r in range(8):
            S(f"v_mov_b32 v{180+r}, 0")
        for r in range(20):
            S(f"v_mov_b32 v{140+r}, 0")
        self.mksrd(S, S_OUT, P_OUT, 2621440)
        self.put(S, self.xitems[1] + self.w1items[1])
        A1, A2 = 188, 189
        S(f"s_mul_i32 s{sA}, s{sW}, {CONV_W}")
        S(f"v_and_b32 v{A1}, 1, v{vT}")
        S(f"v_cmp_eq_u32 vcc, 1, v{A1}")
        S(f"v_lshlrev_b32 v{vH}, 2, v{vT}")
        S(f"v_lshl_add_u32 v{vH}, v{vQ}, 4, v{vH}")
        S(f"v_mov_b32 v{A1}, {C_H2}")
        S(f"v_mov_b32 v{A2}, {C_H0 + 4}")
        S(f"v_cndmask_b32 v{A1}, v{A1}, v{A2}, vcc")
        S(f"v_add3_u32 v{vH}, v{vH}, v{A1}, s{sA}")
        S(f"v_mov_b32 v{A1}, {C_KVB + 448}")
        S(f"v_mov_b32 v{A2}, {C_KVA + 448}")
        S(f"v_cndmask_b32 v{A1}, v{A1}, v{A2}, vcc")
        S(f"v_lshrrev_b32 v{A2}, 1, v{vT}")
        S(f"v_lshlrev_b32 v{A2}, 6, v{A2}")
        S(f"v_sub_u32 v{A1}, v{A1}, v{A2}")
        S(f"v_lshlrev_b32 v{A2}, 4, v{vQ}")
        S(f"v_add3_u32 v{vKV}, v{A1}, v{A2}, s{sA}")
        if self.o("exstage", 2) == -2:
            S.extend(EX)
        skip = self.label("noinit2")
        S(f"s_cmp_ge_u32 s{sG}, {NINIT}")
        S(f"s_cbranch_scc1 {skip}")
        S.optbeg()
        S.wait(self.t_init)
        S("s_mov_b64 exec, 1")
        S.vm(f"buffer_atomic_add v{vONE}, v{vZERO}, {srd(S_DBG)}, 0 offen sc1")
        S("s_mov_b64 exec, -1")
        S.optend()
        S(f"{skip}:")

    def w1_slot_base(self, slot):
        return L_W1 + 5120 * slot

    def x_group(self, g):
        T = Stream()
        self.mod5(T, sS2, sR5, g, sS3)
        T(f"s_lshl_b32 s{sS2}, s{sS2}, 8")
        items = [self.dma_item(160 + i, S_X, f"s{sS2}", sY, 4096 * (g % 3) + 1024 * i) for i in range(4)]
        items[0].pre.ops = T.ops + items[0].pre.ops
        self.t_x[g] = [it.tok for it in items]
        return items

    def w1_stage(self, st):
        T = Stream()
        self.mod5(T, sS0, sR5, st, sS1)
        T(f"s_lshl_b32 s{sS0}, s{sS0}, 2")
        T(f"s_add_u32 s{sS0}, s{sS0}, s{sW}")
        T(f"s_mul_i32 s{sS0}, s{sS0}, 40960")
        T(f"s_add_u32 s{sS0}, s{sS0}, s{sCB160}")
        T(f"s_mul_i32 s{sS1}, s{sW}, 5120")
        items = [self.dma_item(168 + j, S_W, f"s{sS0}", sS1, self.w1_slot_base(4 * st) + 1024 * j) for j in range(5)]
        items[0].pre.ops = T.ops + items[0].pre.ops
        self.t_w1[st] = [it.tok for it in items]
        return items

    def gemm1(self):
        S = self.S
        XF, ACC, CS = 40, 120, 140
        w2q = self.w2_items()
        WB = lambda s, nu: 20 * (s & 1) + 4 * nu

        def reads(s):
            out = []
            b = self.w1_slot_base(s)
            for nu in range(5):
                for jh in range(2):
                    T = Stream()
                    t = T.ds(f"ds_read_b64_tr_b16 a[{WB(s,nu)+2*jh}:{WB(s,nu)+2*jh+1}], {self.ldsaddr(vTR, b + 2560*jh + 32*nu)}")
                    out.append((T.ops, t, nu))
            return out

        rd = {}
        side = []
        nw2 = self.o("nw2", [0, 0, 0, 0, 0])
        for st in range(5):
            S.wait(self.t_x[st])
            for e in range(4):
                s = 4 * st + e
                rd[s] = S.ds(f"ds_read_b128 v[{XF+4*s}:{XF+4*s+3}], v{164+e} offset:{4096*(st % 3)}")
            S.wait(self.t_w1[st])
            S.barrier()
            if st == 0:
                self.stamp(S, "bar0")
            if st == 4:
                self.stamp(S, "bar4")
            cur = reads(4 * st)
            for ops, t, nu in cur:
                S.extend(ops)
            if st + 2 < 5:
                side += self.xitems[st + 2] + self.w1items[st + 2]
            if st == 4:
                side += self.kv_items
            side += w2q[:nw2[st]]
            w2q = w2q[nw2[st]:]
            X = Stream()
            self.stats1(X, st, rd, XF)
            X, side = sprinkle(X, side, 8, 70)
            S.extend(X)
            for s in range(4 * st, 4 * st + 4):
                nxt = reads(s + 1) if (s + 1) % 4 else []
                for nu in range(5):
                    if nu in (0, 2, 4):
                        S.wait([t for o, t, n in cur if n <= nu + 1])
                    it = None
                    if nu in (1, 3) and side:
                        it = side.pop(0)
                        S.extend(it.pre)
                    c = "0" if s == 0 else f"v[{ACC+4*nu}:{ACC+4*nu+3}]"
                    S(f"v_mfma_f32_16x16x32_bf16 v[{ACC+4*nu}:{ACC+4*nu+3}], a[{WB(s,nu)}:{WB(s,nu)+3}], v[{XF+4*s}:{XF+4*s+3}], {c}")
                    if it:
                        S.extend(it.post)
                    for ops, t, n in nxt[2 * nu:2 * nu + 2]:
                        S.extend(ops)
                lab = self.label("cs")
                S(f"s_cmp_lg_u32 s{sW}, {s % 4}")
                S(f"s_cbranch_scc1 {lab}")
                for nu in range(5):
                    S(f"v_mfma_f32_16x16x32_bf16 v[{CS+4*nu}:{CS+4*nu+3}], a[{WB(s,nu)}:{WB(s,nu)+3}], v[176:179], v[{CS+4*nu}:{CS+4*nu+3}]")
                S(f"{lab}:")
                cur = nxt
            self.put(S, side)
            side = []
            if self.o("exstage", 2) == st:
                S.extend(self.extras)
            if self.o("l2t", 0) and st == self.o("w2tst", 3):
                self.mksrd(S, S_M, P_W2, 819200)
                if self.mapping == "4x8":
                    S(f"s_mul_i32 s{sA}, s{sR4}, {50*128}")
                    S("s_mov_b32 exec_hi, 0x3ffff")
                    S.vm(f"buffer_load_dword v197, v196, {srd(S_M)}, s{sA} offen")
                else:
                    S(f"v_mul_u32_u24 v198, 13108, v{vLANE}")
                    S(f"v_lshrrev_b32 v198, 16, v198")
                    S(f"v_mul_u32_u24 v198, 640, v198")
                    S(f"v_add_u32 v198, v198, v196")
                    S(f"s_mul_i32 s{sA}, s{sR4}, {5*1280}")
                    S(f"s_lshr_b32 s{sB}, s{sCB}, 2")
                    S(f"s_mul_i32 s{sB}, s{sB}, 640")
                    S(f"s_add_u32 s{sA}, s{sA}, s{sB}")
                    S("s_mov_b64 exec, 0x1ffffff")
                    S.vm(f"buffer_load_dword v197, v198, {srd(S_M)}, s{sA} offen")
                S("s_mov_b64 exec, -1")
        S(f"v_lshlrev_b32 v189, 4, v{vQ}")
        S(f"v_add_u32 v188, s{sY}, v189")
        S(f"v_add_u32 v189, {L_XR}, v189")
        S("s_mov_b32 exec_lo, 0x00010001")
        S("s_mov_b32 exec_hi, 0x00010001")
        for nu in range(5):
            S.ds(f"ds_write_b128 v188, v[{CS+4*nu}:{CS+4*nu+3}] offset:{O_CS1 + 64*nu}")
        S("s_mov_b64 exec, -1")
        self.pp_read(S)
        S.wait_all(vm=False, ds=True)
        S.barrier()
        self.stamp(S, "g1mfma")
        rdc = {}
        for w in range(4):
            for nu in range(5):
                rdc[w, nu] = S.ds(f"ds_read_b128 v[{XF+20*w+4*nu}:{XF+20*w+4*nu+3}], v189 offset:{O_CS1 + XR_W*w + 64*nu}")
        self.stats1_fin(S)
        KA, KB = 190, 186
        E = Stream()
        HP = 100
        E(f"s_lshl_b32 s{sE}, s{sRB}, 2")
        E(f"s_add_u32 s{sE}, s{sE}, s{sW}")
        E(f"s_lshl_b32 s{sU}, s{sE}, 7")
        E(f"s_mul_i32 s{sE}, s{sE}, 20480")
        E(f"s_mul_i32 s{sF}, s{sCB}, 2560")
        E(f"s_add_u32 s{sF}, s{sF}, s{sE}")
        E(f"s_add_u32 s{sC}, s{sF}, {WS_H}")
        self.t_rdy = self.poll_load(E, 199, vZERO, S_DBG)
        E.wait([rdc[w, nu] for w in range(2) for nu in range(5)])
        for p in range(10):
            E(f"v_pk_add_f32 v[{XF+2*p}:{XF+2*p+1}], v[{XF+2*p}:{XF+2*p+1}], v[{XF+20+2*p}:{XF+20+2*p+1}]")
        E.wait(list(rdc.values()))
        for p in range(10):
            E(f"v_pk_add_f32 v[{XF+40+2*p}:{XF+40+2*p+1}], v[{XF+40+2*p}:{XF+40+2*p+1}], v[{XF+60+2*p}:{XF+60+2*p+1}]")
        for p in range(10):
            E(f"v_pk_add_f32 v[{XF+2*p}:{XF+2*p+1}], v[{XF+2*p}:{XF+2*p+1}], v[{XF+40+2*p}:{XF+40+2*p+1}]")
        for p in range(10):
            E(f"v_pk_fma_f32 v[{ACC+2*p}:{ACC+2*p+1}], v[{XF+2*p}:{XF+2*p+1}], v[{KB}:{KB+1}], v[{ACC+2*p}:{ACC+2*p+1}] op_sel_hi:[1,0,1]")
        st = []
        self.gelu_pairs(E, [(ACC + 2 * p, HP + p) for p in range(4)], 80, KA, KB)
        st.append(E.vm(f"buffer_store_dwordx4 v[{HP}:{HP+3}], v{vL16}, {srd(S_WS)}, s{sC} offen sc1"))
        self.gelu_pairs(E, [(ACC + 2 * p, HP + p) for p in range(4, 8)], 80, KA, KB)
        st.append(E.vm(f"buffer_store_dwordx4 v[{HP+4}:{HP+7}], v{vL16}, {srd(S_WS)}, s{sC} offen offset:1024 sc1"))
        self.gelu_pairs(E, [(ACC + 2 * p, HP + p) for p in range(8, 10)], 80, KA, KB)
        st.append(E.vm(f"buffer_store_dwordx2 v[{HP+8}:{HP+9}], v{vL8}, {srd(S_WS)}, s{sC} offen sc1"))
        self.t_hst = st + [self.t_st1]
        E, self.side = sprinkle(E, w2q, self.o("s_e1", 10000), self.o("p_e1", 125))
        S.extend(E)
        self.stamp(S, "g1epi")

    def stats1(self, S, g, rd, XF):
        for e in range(4):
            s = 4 * g + e
            if e % 2 == 0:
                S.wait(rd[s], rd[s + 1])
            for r in range(4):
                S(f"v_dot2c_f32_bf16 v{180+r}, s{sONES}, v{XF+4*s+r}")
            for r in range(4):
                S(f"v_dot2c_f32_bf16 v{184+r}, v{XF+4*s+r}, v{XF+4*s+r}")

    def stats1_fin(self, S):
        S("v_add_f32 v180, v180, v181\n v_add_f32 v182, v182, v183\n v_add_f32 v184, v184, v185\n v_add_f32 v186, v186, v187")
        S("v_add_f32 v180, v180, v182\n v_add_f32 v181, v184, v186")
        self.qreduce2(S, 180, 181, 182)
        S(f"v_mul_f32 v184, s{sINV}, v180")
        S(f"v_mul_f32 v181, s{sINV}, v181")
        S(f"v_fma_f32 v181, -v184, v184, v181")
        S(f"v_max_f32 v181, 0, v181")
        S(f"v_add_f32 v182, s{sEPS}, v181")
        S(f"v_rsq_f32 v185, v182")
        S(f"s_lshl_b32 s{sA}, s{sRB}, 3")
        S(f"v_mul_f32 v181, v181, v185")
        S(f"v_mul_f32 v182, v182, v185")
        S(f"v_mul_f32 v181, v181, v185")
        S(f"v_add_f32 v181, s{sEPS}, v181")
        S(f"v_rsq_f32 v183, v181")
        S(f"s_add_u32 s{sA}, s{sA}, s{sCB}")
        S(f"v_mul_f32 v181, v181, v183")
        S(f"v_mul_f32 v183, v185, v183")
        S(f"v_mul_f32 v187, v181, v182")
        S(f"v_sub_f32 v186, 0, v184")
        self.gelu_consts(S, 183, 190)
        S(f"s_lshl_b32 s{sA}, s{sA}, 9")
        S(f"s_lshl_b32 s{sB}, s{sW}, 7")
        S(f"s_add_u32 s{sH}, s{sA}, s{sB}")
        S(f"s_add_u32 s{sA}, s{sH}, {WS_ST1 - 2048}")
        S("s_mov_b64 exec, 0xffff")
        self.t_st1 = S.vm(f"buffer_store_dwordx2 v[184:185], v{vL8}, {srd(S_WS)}, s{sA} offen sc1")
        S("s_mov_b64 exec, -1")

    def kvx_items(self):
        self.kv_items, self.xt_items = [], []
        self.t_k, self.t_v, self.t_xt = [], [], []
        T = Stream()
        T(f"s_sub_u32 s{sS5}, s{sT0}, 4")
        T(f"s_mul_i32 s{sS5}, s{sS5}, 1280")
        for j in range(4):
            T(f"v_add_u32 v{160+j}, s{sS5}, v{vNAT+j}")
        for j in range(4):
            it = self.dma_item(160 + j, S_K, f"s{sCB160}", sY, 1024 * j, mask="s_mov_b64 exec, 0xff" if j == 3 else None)
            if j == 0:
                it.pre.ops = T.ops + it.pre.ops
            self.t_k.append(it.tok)
            self.kv_items.append(it)
        for sr, base, lst, dst in ((S_V, 3200, self.t_v, self.kv_items), (S_X, 5760, self.t_xt, self.xt_items)):
            for j in range(3):
                it = self.dma_item(vNAT + j, sr, f"s{sS5}", sY, base + 1024 * j, mask="s_mov_b32 exec_hi, 0" if j == 2 else None,
                                   pre=f"s_mul_i32 s{sS5}, s{sT0}, 1280\n s_add_u32 s{sS5}, s{sS5}, s{sCB160}" if j == 0 else None)
                lst.append(it.tok)
                dst.append(it)

    def ssm_touch(self):
        it = Item()
        if self.o("touch", 1) and self.o("ssmdel", 1):
            T = it.post
            lab = self.label("nossm")
            T(f"s_cmp_lt_u32 s{sCI}, 20")
            T(f"s_cbranch_scc1 {lab}")
            T.optbeg()
            self.mksrd(T, S_M, P_SSMK, 2621440)
            T(f"s_sub_u32 s43, s{sCI}, 20")
            T(f"s_lshl_b32 s43, s43, 3")
            T(f"s_add_u32 s43, s43, s{sCB}")
            T(f"s_lshl_b32 s43, s43, 2")
            T(f"s_add_u32 s43, s43, s{sW}")
            T(f"s_mul_i32 s43, s43, {54*128}")
            T(f"v_lshlrev_b32 v252, 7, v{vLANE}")
            T("s_mov_b32 exec_hi, 0x3fffff")
            T.vm(f"buffer_load_dword v253, v252, {srd(S_M)}, s43 offen")
            T("s_mov_b64 exec, -1")
            T.optend()
            T(f"{lab}:")
        elif self.o("touch", 1):
            T = it.pre
            self.mksrd(T, S_M, P_SSMK, 2621440)
            T(f"s_min_u32 s43, s{sCI}, 19")
            T(f"s_lshl_b32 s43, s43, 2")
            T(f"s_add_u32 s43, s43, s{sW}")
            T(f"s_mul_i32 s{sA}, s{sCB}, 80")
            T(f"s_add_u32 s43, s43, s{sA}")
            T(f"s_lshl_b32 s43, s43, 12")
            T(f"v_lshlrev_b32 v252, 7, v{vLANE}")
            it.post("s_mov_b32 exec_hi, 0")
            it.post.vm(f"buffer_load_dword v253, v252, {srd(S_M)}, s43 offen")
            it.post("s_mov_b64 exec, -1")
        return it

    def pp_guard(self, S, fn):
        lab = self.label("nopp")
        S(f"s_cmp_ge_u32 s40, 560")
        S(f"s_cbranch_scc1 {lab}")
        S.optbeg()
        fn(S)
        S.optend()
        S(f"{lab}:")

    def pp_load(self, S):
        S(f"s_lshl_b32 s{sA}, s{sRB}, 3")
        S(f"s_add_u32 s{sA}, s{sA}, s{sCB}")
        S(f"s_lshl_b32 s40, s{sA}, 1")
        S(f"s_add_u32 s40, s40, s{sW}")
        S(f"s_add_u32 s{sA}, s{sA}, {512 - 208}")
        S(f"s_cmp_ge_u32 s{sRB}, 26")
        S(f"s_cselect_b32 s{sA}, s{sA}, 560")
        S(f"s_cmp_eq_u32 s{sW}, 2")
        S(f"s_cselect_b32 s40, s{sA}, s40")
        S(f"s_cmp_eq_u32 s{sW}, 3")
        S(f"s_cselect_b32 s40, 560, s40")

        def f(T):
            self.mksrd(T, S_M, P_W4, 2211840)
            T(f"s_mul_i32 s{sA}, s40, 6554")
            T(f"s_lshr_b32 s{sA}, s{sA}, 16")
            T(f"s_mul_i32 s{sB}, s{sA}, 10")
            T(f"s_sub_u32 s41, s40, s{sB}")
            T(f"s_mul_i32 s{sB}, s{sA}, 4682")
            T(f"s_lshr_b32 s36, s{sB}, 16")
            T(f"s_mul_i32 s{sB}, s36, 14")
            T(f"s_sub_u32 s37, s{sA}, s{sB}")
            T(f"s_mul_i32 s{sA}, s37, 21846")
            T(f"s_lshr_b32 s{sA}, s{sA}, 16")
            T(f"s_lshl_b32 s{sA}, s{sA}, 4")
            T(f"s_lshl_b32 s{sB}, s37, 5")
            T(f"s_add_u32 s{sA}, s{sA}, s{sB}")
            T(f"s_add_u32 s{sB}, s{sA}, 16")
            T(f"s_cmp_eq_u32 s37, 12")
            T(f"s_cselect_b32 s{sA}, 96, s{sA}")
            T(f"s_cselect_b32 s{sB}, 208, s{sB}")
            T(f"s_cmp_eq_u32 s37, 13")
            T(f"s_cselect_b32 s{sA}, 320, s{sA}")
            T(f"s_cselect_b32 s{sB}, 320, s{sB}")
            T(f"s_mul_i32 s{sC}, s36, 432")
            T(f"s_add_u32 s{sA}, s{sA}, s{sC}")
            T(f"s_add_u32 s{sB}, s{sB}, s{sC}")
            T(f"s_mul_i32 s{sA}, s{sA}, 1280")
            T(f"s_mul_i32 s{sB}, s{sB}, 1280")
            T(f"s_lshl_b32 s{sC}, s41, 7")
            T(f"s_add_u32 s{sA}, s{sA}, s{sC}")
            T(f"s_add_u32 s{sB}, s{sB}, s{sC}")
            T(f"v_lshrrev_b32 v210, 3, v{vLANE}")
            T(f"v_mul_u32_u24 v210, 1280, v210")
            T(f"v_and_b32 v211, 7, v{vLANE}")
            T(f"v_lshl_add_u32 v210, v211, 4, v210")
            T(f"s_lshl_b32 s{sC}, s{sW}, 12")
            T(f"s_add_u32 s{sC}, s{sC}, {L_KVT}")
            self.t_pp = []
            for i in range(4):
                d = self.dma_item(210, S_M, f"s{sA + (i >> 1)}", sC, 1024 * i,
                                  pre=f"s_add_u32 s{sA + (i >> 1)}, s{sA + (i >> 1)}, {8*1280}" if i & 1 else None)
                self.t_pp.append(d.tok)
                T.extend(d.flat())
            T(f"v_lshrrev_b32 v210, 2, v{vLANE}")
            T(f"v_lshlrev_b32 v210, 7, v210")
            T(f"v_and_b32 v211, 3, v{vLANE}")
            T(f"v_lshl_add_u32 v210, v211, 3, v210")
            T(f"v_add_u32 v210, s{sC}, v210")
        self.pp_guard(S, f)

    def pp_read(self, S):
        def f(T):
            T.wait(self.t_pp)
            for i in range(4):
                for jh in range(2):
                    r = 212 + 4 * i + 2 * jh
                    T.ds(f"ds_read_b64_tr_b16 v[{r}:{r+1}], v210 offset:{2048*jh + 32*i}")
        self.pp_guard(S, f)

    def pp_store(self, S):
        self.t_ppst = []

        def f(T):
            T(f"s_mul_i32 s38, s36, 71680")
            T(f"s_mul_i32 s{sA}, s37, 5120")
            T(f"s_add_u32 s38, s38, s{sA}")
            T(f"s_add_u32 s38, s38, {WS_W4P}")
            for i in range(4):
                T(f"s_lshl_b32 s{sA}, s41, 2")
                T(f"s_add_u32 s{sA}, s{sA}, {i}")
                T(f"s_mul_i32 s{sB}, s{sA}, 13108")
                T(f"s_lshr_b32 s{sB}, s{sB}, 16")
                T(f"s_lshl_b32 s{sA}, s{sA}, 10")
                T(f"s_mul_i32 s{sB}, s{sB}, {4*71680 - 5*1024}")
                T(f"s_add_u32 s{sA}, s{sA}, s{sB}")
                T(f"s_add_u32 s{sA}, s{sA}, s38")
                r = 212 + 4 * i
                self.t_ppst.append(T.vm(f"buffer_store_dwordx4 v[{r}:{r+3}], v{vL16}, {srd(S_WS)}, s{sA} offen sc1"))
        self.pp_guard(S, f)

    def pp_flag(self, S):
        def f(T):
            for i in (0, 3):
                T(f"s_lshl_b32 s{sA}, s41, 2")
                T(f"s_add_u32 s{sA}, s{sA}, {i}")
                T(f"s_mul_i32 s{sA}, s{sA}, 13108")
                T(f"s_lshr_b32 s{sA}, s{sA}, 16")
                T(f"s_mul_i32 s{sB}, s{sA}, 5")
                T(f"s_lshr_b32 s{sB}, s{sB}, 2")
                T(f"s_sub_u32 s{sB}, s41, s{sB}")
                T(f"s_lshl_b32 s{sC}, s37, 1")
                T(f"s_add_u32 s{sB}, s{sB}, s{sC}")
                T(f"s_lshl_b32 s{sB}, s{sB}, 2")
                T(f"s_lshl_b32 s{sA}, s{sA}, 2")
                T(f"s_add_u32 s{sA}, s{sA}, s36")
                T(f"s_lshl_b32 s{sA}, s{sA}, 7")
                T(f"s_add_u32 s{sA}, s{sA}, s{sB}")
                T(f"s_add_u32 s{sA}, s{sA}, {FL_P*128}")
                self.flag_store(T, sA)
        self.pp_guard(S, f)

    def w2_items(self):
        G = []
        self.t_w2 = []
        for i in range(5):
            T = Stream()
            if i == 0:
                self.mksrd(T, S_W, P_W2, 819200)
                T(f"s_mul_i32 s{sS0}, s{sW}, 40960")
                T(f"s_add_u32 s{sS0}, s{sS0}, s{sCB160}")
                T(f"s_mul_i32 s{sS1}, s{sW}, 5120")
            else:
                T(f"s_add_u32 s{sS0}, s{sS0}, {4*40960}")
            for j in range(5):
                it = self.dma_item(vNAT + j, S_W, f"s{sS0}", sS1, L_W2 + 20480 * i + 1024 * j)
                if j == 0:
                    it.pre.ops = T.ops + it.pre.ops
                self.t_w2.append(it.tok)
                G.append(it)
        return G

    def window1(self):
        S = self.S
        D = Stream()
        D(f"s_add_u32 s{sC}, s{sW}, 1")
        D(f"s_min_u32 s{sC}, s{sC}, 3")
        D(f"s_sub_u32 s{sC}, s{sC}, s{sW}")
        D(f"s_lshl_b32 s{sC}, s{sC}, 7")
        D(f"v_lshlrev_b32 v{vFA}, 2, v{vLANE}")
        D(f"v_mov_b32 v163, s{sC}")
        D(f"v_cmp_lt_u32 vcc, 7, v{vLANE}")
        D(f"v_cndmask_b32 v{vFA}, v{vFA}, v163, vcc")
        for j in range(7):
            self.divpat(D, 166 + j, j, 14, 3456, 180)
        D(f"v_add_u32 v160, s{sY}, v{vTR}")
        D(f"v_mul_u32_u24 v161, 160, v{vT}")
        D(f"v_lshl_add_u32 v161, v{vQ}, 3, v161")
        D(f"v_add_u32 v161, s{sY}, v161")
        self.kv_coeffs(D)
        self.kv_reads(D)
        D.wait_all(vm=False, ds=True)

        def sig(T):
            self.signal_f1(T)
            self.stamp(T, "f1sent")
        self.kv_compute(D, self.o("f1tau", 0), sig)
        q = self.xt_items + self.side
        D, q = sprinkle(D, q, 0, self.o("p_w1", 60))
        S.extend(D)
        NL = min(self.o("w2late", 4), len(q))
        self.put(S, q[:len(q)-NL])
        t_poll = self.poll_load(S, vFD, vFA, S_WS, f"s{sU}")
        self.put(S, q[len(q)-NL:])
        self.side = []
        self.poll_check(S, t_poll, vFD, vFA, S_WS, f"s{sU}")
        self.stamp(S, "f1seen")

    def kv_coeffs(self, D):
        D.wait(self.t_sk)
        D(f"v_mov_b32 v183, 0xffff")
        for tau in range(5):
            s01, s23, c = 200 + 2 * tau, 201 + 2 * tau, 228 + 5 * tau
            D(f"v_alignbit_b32 v{c}, v{s01}, v{s01}, 16")
            D(f"v_alignbit_b32 v{c+1}, v{s23}, v{s23}, 16")
            D(f"v_and_b32 v{c+2}, v183, v{s01}")
            D(f"v_bfi_b32 v{c+3}, v183, v{s23}, v{s01}")
            D(f"v_and_b32 v{c+4}, s{sMASK}, v{s23}")
        D(f"v_mul_u32_u24 v162, 144, v{vT}")
        D(f"v_lshlrev_b32 v163, 3, v{vQ}")
        D(f"v_sub_u32 v162, v162, v163")
        D(f"s_lshl_b32 s{sC}, s{sW}, 5")
        D(f"s_sub_u32 s{sC}, {L_KVT + 120}, s{sC}")
        D(f"v_add_u32 v162, s{sC}, v162")
        D(f"v_lshrrev_b32 v157, 3, v{vLANE}")
        D(f"v_and_b32 v158, 7, v{vLANE}")
        D(f"v_lshlrev_b32 v158, 4, v158")
        D(f"v_mul_u32_u24 v156, 144, v157")
        D(f"v_add_u32 v156, v156, v158")
        D(f"s_mul_i32 s{sC}, s{sW}, {20*144}")
        D(f"s_add_u32 s{sC}, s{sC}, {L_KVT}")
        D(f"v_add_u32 v156, s{sC}, v156")
        D(f"v_lshl_add_u32 v157, v157, 12, v158")
        D(f"s_mul_i32 s{sC}, s{sCB}, 80")
        D(f"s_mul_i32 s{sD}, s{sW}, 20")
        D(f"s_add_u32 s{sC}, s{sC}, s{sD}")
        D(f"s_lshl_b32 s{sC}, s{sC}, 12")
        D(f"s_lshl_b32 s{sD}, s{sRB}, 7")
        D(f"s_sub_u32 s{sC}, s{sC}, s{sD}")
        D(f"s_add_u32 s39, s{sC}, {WS_KVR + 3968}")

    def kv_reads(self, E):
        E.wait(self.t_k, self.t_v)
        for tau in range(5):
            b = 60 + 6 * tau
            E.ds(f"ds_read_b64_tr_b16 v[{b}:{b+1}], v160 offset:{32*tau}")
            E.ds(f"ds_read_b64_tr_b16 v[{b+2}:{b+3}], v160 offset:{640 + 32*tau}")
            E.ds(f"ds_read_b64_tr_b16 v[{b+4}:{b+5}], v160 offset:{3200 + 32*tau}")

    def kv_compute(self, E, mid_tau, mid_fn):
        for tau in range(5):
            b, c = 60 + 6 * tau, 228 + 5 * tau
            O, V, P = 40 + 4 * (tau & 1), 48 + 4 * (tau & 1), 90 + 2 * tau
            if tau == mid_tau:
                mid_fn(E)
            E(f"v_dot2_f32_bf16 v{O}, v{b+2}, v{c+2}, 0")
            E(f"v_dot2_f32_bf16 v{O+1}, v{b+2}, v{c}, 0")
            E(f"v_dot2_f32_bf16 v{O+2}, v{b+3}, v{c+2}, 0")
            E(f"v_dot2_f32_bf16 v{O+3}, v{b+3}, v{c}, 0")
            E(f"v_lshlrev_b32 v{V}, 16, v{b+4}")
            E(f"v_and_b32 v{V+1}, s{sMASK}, v{b+4}")
            E(f"v_dot2_f32_bf16 v{O}, v{b+1}, v{c+3}, v{O}")
            E(f"v_dot2_f32_bf16 v{O+1}, v{b+1}, v{c+1}, v{O+1}")
            E(f"v_dot2_f32_bf16 v{O+2}, v{b+2}, v{c+3}, v{O+2}")
            E(f"v_dot2_f32_bf16 v{O+3}, v{b+2}, v{c+1}, v{O+3}")
            E(f"v_dot2_f32_bf16 v{O}, v{b}, v{c+4}, v{O}")
            E(f"v_dot2_f32_bf16 v{O+2}, v{b+1}, v{c+4}, v{O+2}")
            E(f"v_lshlrev_b32 v{V+2}, 16, v{b+5}")
            E(f"v_and_b32 v{V+3}, s{sMASK}, v{b+5}")
            E(f"s_nop 0")
            E(f"v_pk_mul_f32 v[{O}:{O+1}], v[{O}:{O+1}], v[{V}:{V+1}]")
            E(f"v_pk_mul_f32 v[{O+2}:{O+3}], v[{O+2}:{O+3}], v[{V+2}:{V+3}]")
            E(f"v_cvt_pk_bf16_f32 v{P+1}, v{O+1}, v{O}")
            E(f"v_cvt_pk_bf16_f32 v{P}, v{O+3}, v{O+2}")
            E.ds(f"ds_write_b64 v162, v[{P}:{P+1}] offset:{16*144*tau}")
        if mid_tau >= 5:
            mid_fn(E)

    def signal_f1(self, E):
        E.wait(self.t_hst)
        self.poll_check(E, self.t_rdy, 199, vZERO, S_DBG, val=NINIT, cmp="gt")
        E(f"s_lshl_b32 s{sC}, s{sCB}, 2")
        E(f"s_add_u32 s{sC}, s{sC}, s{sU}")
        self.flag_store(E, sC)
        self.self_touch(E, WS_H)

    def self_touch(self, E, base):
        if self.o("selft", 0):
            E(f"s_add_u32 s{sC}, s{sF}, {base}")
            E("s_mov_b64 exec, 0xfffff")
            E.vm(f"buffer_load_dword v197, v196, {srd(S_WS)}, s{sC} offen sc1")
            E("s_mov_b64 exec, -1")

    @staticmethod
    def ksteps():
        out = []
        for P in range(4):
            for e, off in ((0, 0), (0, 1024), (1, 2560), (1, 3584)):
                f = 0 if off in (0, 2560) else 1
                r0 = 80 * (2 * P + e) + 32 * f
                out.append(("full", P, off, (r0, r0 + 16)))
            out.append(("half", P, None, (160 * P + 64, 160 * P + 144)))
        return out

    def a_items(self, reg, soffreg, step, pre=None):
        kind, P, off, rows = step
        if kind == "full":
            return [self.vm_item(f"buffer_load_dwordx4 v[{reg}:{reg+3}], v{vL16}, {srd(S_WS)}, s{soffreg} offen offset:{off} {self.ld}", pre=pre)]
        it = self.vm_item(f"buffer_load_dwordx2 v[{reg}:{reg+1}], v{vL8}, {srd(S_WS)}, s{soffreg} offen {self.ld}", pre=pre)
        it.tok2 = it.post.vm(f"buffer_load_dwordx2 v[{reg+2}:{reg+3}], v{vL8}, {srd(S_WS)}, s{soffreg} offen offset:2560 {self.ld}")
        it.tok = it.tok2
        return [it]

    def group_offsets(self, S, base_sreg, const):
        for g in range(4):
            S(f"s_add_u32 s{sP0+g}, s{base_sreg}, {const + 5120*g}")

    def w3_items(self, S):
        self.mksrd(S, S_W, P_W3, 2211840)
        if self.o("g3n", 4) == 8 and self.mapping == "8x4":
            S(f"s_bfe_u32 s{sA}, s{sRB}, 0x10003")
            S(f"s_lshl_b32 s{sA}, s{sA}, 3")
            S(f"s_add_u32 s{sJJ}, s{sA}, s{sCB}")
            S(f"s_lshr_b32 s{sPP}, s{sRB}, 4")
            S(f"s_lshl_b32 s{sPP}, s{sPP}, 3")
            S(f"s_and_b32 s{sA}, s{sRB}, 7")
            S(f"s_add_u32 s{sPP}, s{sPP}, s{sA}")
        elif self.o("g3n", 4) == 8:
            S(f"s_bfe_u32 s{sA}, s{sRB}, 0x20002")
            S(f"s_lshl_b32 s{sA}, s{sA}, 2")
            S(f"s_and_b32 s{sB}, s{sCB}, 3")
            S(f"s_add_u32 s{sJJ}, s{sA}, s{sB}")
            S(f"s_lshr_b32 s{sPP}, s{sRB}, 4")
            S(f"s_lshl_b32 s{sPP}, s{sPP}, 2")
            S(f"s_and_b32 s{sA}, s{sRB}, 3")
            S(f"s_add_u32 s{sPP}, s{sPP}, s{sA}")
            S(f"s_lshl_b32 s{sPP}, s{sPP}, 1")
            S(f"s_lshr_b32 s{sA}, s{sCB}, 2")
            S(f"s_add_u32 s{sPP}, s{sPP}, s{sA}")
        elif self.mapping == "4x8" and self.o("g3n", 4) == 4:
            S(f"s_bfe_u32 s{sA}, s{sRB}, 0x10002")
            S(f"s_lshl_b32 s{sA}, s{sA}, 3")
            S(f"s_add_u32 s{sJJ}, s{sA}, s{sCB}")
            S(f"s_lshr_b32 s{sPP}, s{sRB}, 3")
            S(f"s_lshl_b32 s{sPP}, s{sPP}, 2")
            S(f"s_and_b32 s{sA}, s{sRB}, 3")
            S(f"s_add_u32 s{sPP}, s{sPP}, s{sA}")
        else:
            S(f"s_and_b32 s{sA}, s{sRB}, 1")
            S(f"s_lshl_b32 s{sA}, s{sA}, 3")
            S(f"s_add_u32 s{sJJ}, s{sA}, s{sCB}")
            S(f"s_lshr_b32 s{sPP}, s{sRB}, 1")
        S(f"s_lshr_b32 s{sA}, s{sJJ}, 2")
        S(f"s_mul_i32 s{sA}, s{sA}, 27")
        S(f"s_and_b32 s{sB}, s{sJJ}, 3")
        S(f"s_mul_i32 s{sB}, s{sB}, 7")
        S(f"s_add_u32 s{sA}, s{sA}, s{sB}")
        S(f"s_lshl_b32 s{sA}, s{sA}, 5")
        S(f"s_mul_i32 s{sS2}, s{sW}, {32*3456}")
        S(f"s_add_u32 s{sS2}, s{sS2}, s{sA}")
        S(f"s_mul_i32 s{sS3}, s{sW}, 7168")
        w3 = {}
        self.t_w3 = {}
        for i in range(5):
            w3[i] = []
            for j in range(7):
                it = self.dma_item(166 + j, S_W, f"s{sS1}", sS3, L_W3 + 28672 * i + 1024 * j,
                                   pre=f"s_add_u32 s{sS1}, s{sS2}, {4*32*3456*i}" if j == 0 else None)
                self.t_w3.setdefault(i, []).append(it.tok)
                w3[i].append(it)
        return w3

    def gemm2(self):
        S = self.S
        AF, ACC = 40, 120
        steps = self.ksteps()
        NB = 12
        WB = lambda s, nu: 20 * (s % NB) + 4 * nu
        self.group_offsets(S, sE, WS_H)
        loads, ta = [], {}
        for s, st in enumerate(steps):
            its = self.a_items(AF + 4 * s, sP0 + st[1], st)
            ta[s] = its[-1].tok
            loads += its
        N0 = self.o("g2n0", 6)
        self.put(S, loads[:N0])
        S(f"s_lshl_b32 s{sA}, s{sW}, 4")
        S(f"v_add_u32 v164, s{sA}, v{vT}")
        S(f"v_cmp_eq_u32 vcc, 63, v164")
        S(f"v_lshlrev_b32 v164, 3, v164")
        S(f"v_add_u32 v164, 8, v164")
        S(f"v_mov_b32 v165, {1024 + 62*8}")
        S(f"s_lshl_b32 s{sS4}, s{sRB}, 12")
        S(f"s_add_u32 s{sS4}, s{sS4}, {WS_ST1}")
        S(f"v_cndmask_b32 v164, v164, v165, vcc")
        w3 = self.w3_items(S)
        S.wait(self.t_xt)
        for tau in range(5):
            S.ds(f"ds_read_b64 v[{vXT+2*tau}:{vXT+2*tau+1}], v161 offset:{5760 + 32*tau}")
        S.wait(self.t_w2)
        S.wait_all(vm=False, ds=True)
        S.barrier()
        self.stamp(S, "w2bar")
        it = self.vm_item(f"buffer_load_dwordx2 v[{vMR}:{vMR+1}], v164, {srd(S_WS)}, s{sS4} offen sc1")
        t_mr = it.tok
        itp = Item()
        self.pp_store(itp.post)
        rr = [S.ds(f"ds_read_b128 v[{144+4*i}:{147+4*i}], v156 offset:{8*144*i}") for i in range(3)]
        self.t_kvst = []
        kvs = []
        for i in range(3):
            itk = self.vm_item(f"buffer_store_dwordx4 v[{144+4*i}:{147+4*i}], v157, {srd(S_WS)}, s39 offen sc1",
                               pre=f"s_add_u32 s39, s39, {8*4096}" if i else None, mask="s_mov_b32 exec_hi, 0" if i == 2 else None)
            itk.pre.wait(rr[i])
            self.t_kvst.append(itk.tok)
            kvs.append(itk)
        tch = []
        if self.o("l2t", 0):
            for e in range(2):
                t = self.vm_item(f"buffer_load_dword v197, v{198+e}, {srd(S_W)}, s{sS5} offen", mask="s_mov_b32 exec_hi, 0x1fff" if e == 0 else "s_mov_b64 exec, 0x3fffffff")
                if e == 0:
                    t.pre(f"v_mul_u32_u24 v198, 4370, v{vLANE}")
                    t.pre(f"v_lshrrev_b32 v198, 16, v198")
                    t.pre(f"v_mul_u32_u24 v198, {3456 - 15*128}, v198")
                    t.pre(f"v_add_u32 v198, v198, v196")
                    t.pre(f"v_add_u32 v199, {3*3456}, v198")
                    t.pre(f"s_lshr_b32 s{sS5}, s{sJJ}, 3")
                    t.pre(f"s_mul_i32 s{sS5}, s{sS5}, 1664")
                    t.pre(f"s_mul_i32 s{sA}, s{sR4}, {5*3456}")
                    t.pre(f"s_add_u32 s{sS5}, s{sS5}, s{sA}")
                tch.append(t)
        early = w3[4] if self.o("w3early", 0) else []
        queue = loads[N0:] + [it] + tch + kvs + [itp] + early
        rdtok = {}

        def reads(s):
            out = []
            rows = steps[s][3]
            for nu in range(5):
                for jh in range(2):
                    T = Stream()
                    t = T.ds(f"ds_read_b64_tr_b16 a[{WB(s,nu)+2*jh}:{WB(s,nu)+2*jh+1}], {self.ldsaddr(vTR, L_W2 + 160*rows[jh] + 32*nu)}")
                    rdtok.setdefault(s, []).append(t)
                    out.append(T.ops)
            return out

        PRE = self.o("g2pre", 2)
        for s in range(PRE):
            for k, ops in enumerate(reads(s)):
                if k == 0 and queue:
                    self.put(S, [queue.pop(0)])
                S.extend(ops)
        for s in range(20):
            nxt = reads(s + PRE) if s + PRE < 20 else []
            S.wait(ta[s], rdtok[s])
            for nu in range(5):
                it = None
                if nu in ((1, 3) if s < self.o("g2two", 6) else (1,)) and queue:
                    it = queue.pop(0)
                    S.extend(it.pre)
                c = "0" if s == 0 else f"v[{ACC+4*nu}:{ACC+4*nu+3}]"
                S(f"v_mfma_f32_16x16x32_bf16 v[{ACC+4*nu}:{ACC+4*nu+3}], a[{WB(s,nu)}:{WB(s,nu)+3}], v[{AF+4*s}:{AF+4*s+3}], {c}")
                if it:
                    S.extend(it.post)
                for ops in nxt[2 * nu:2 * nu + 2]:
                    S.extend(ops)
        self.put(S, queue)
        S.wait_all(vm=False, ds=True)
        S.barrier()
        self.stamp(S, "g2mfma")
        wq = w3[0] + w3[1] + w3[2]
        self.w3late = w3[3] + ([] if early else w3[4])
        E = Stream()
        XFp = 40
        E.wait(t_mr)
        E(f"v_mul_f32 v{vMR}, v{vMR}, v{vMR+1}")
        E(f"v_sub_f32 v{vMR}, 0, v{vMR}")
        for p in range(10):
            E(f"v_lshlrev_b32 v{XFp+2*p}, 16, v{vXT+p}")
            E(f"v_and_b32 v{XFp+2*p+1}, s{sMASK}, v{vXT+p}")
        for p in range(10):
            E(f"v_pk_fma_f32 v[{ACC+2*p}:{ACC+2*p+1}], v[{XFp+2*p}:{XFp+2*p+1}], v[{vMR}:{vMR+1}], v[{ACC+2*p}:{ACC+2*p+1}] op_sel:[0,1,0] op_sel_hi:[1,1,1]")
        for p in range(10):
            E(f"v_pk_add_f32 v[{ACC+2*p}:{ACC+2*p+1}], v[{ACC+2*p}:{ACC+2*p+1}], v[{vMR}:{vMR+1}] op_sel_hi:[1,0]")
        E(f"s_add_u32 s{sC}, s{sF}, {WS_X1}")
        PK = 100
        for p in range(10):
            E(f"v_cvt_pk_bf16_f32 v{PK+p}, v{ACC+2*p}, v{ACC+2*p+1}")
        st = []
        st.append(E.vm(f"buffer_store_dwordx4 v[{PK}:{PK+3}], v{vL16}, {srd(S_WS)}, s{sC} offen sc1"))
        st.append(E.vm(f"buffer_store_dwordx4 v[{PK+4}:{PK+7}], v{vL16}, {srd(S_WS)}, s{sC} offen offset:1024 sc1"))
        st.append(E.vm(f"buffer_store_dwordx2 v[{PK+8}:{PK+9}], v{vL8}, {srd(S_WS)}, s{sC} offen sc1"))
        for r in range(4):
            E(f"v_mov_b32 v{80+r}, 0")
        for p in range(10):
            E(f"v_dot2c_f32_bf16 v{80+(p&1)}, s{sONES}, v{PK+p}")
            E(f"v_dot2c_f32_bf16 v{82+(p&1)}, v{PK+p}, v{PK+p}")
        E(f"s_add_u32 s{sC}, s{sH}, {WS_PS - 2048}")
        E("v_add_f32 v80, v80, v81\n v_add_f32 v81, v82, v83")
        self.qreduce2(E, 80, 81, 82)
        E("s_mov_b64 exec, 0xffff")
        st.append(E.vm(f"buffer_store_dwordx2 v[80:81], v{vL8}, {srd(S_WS)}, s{sC} offen sc1"))
        E("s_mov_b64 exec, -1")
        E, wq = sprinkle(E, wq, self.o("s_e2", 0), self.o("p_e2", 130))
        S.extend(E)
        self.stamp(S, "g2epi")

        def send_f2(T):
            T.wait(st)
            T(f"s_lshl_b32 s{sC}, s{sCB}, 2")
            T(f"s_add_u32 s{sC}, s{sC}, s{sU}")
            T(f"s_add_u32 s{sC}, s{sC}, {FL_F2*128}")
            self.flag_store(T, sC)
            self.self_touch(T, WS_X1)
            T.wait(self.t_ppst)
            self.pp_flag(T)
            self.stamp(T, "f2sent")
        E = Stream()
        for p in range(10):
            E(f"v_mov_b32 v{vX1+p}, v{PK+p}")
        E(f"v_lshrrev_b32 v183, 2, v{vLANE}")
        E(f"v_mul_u32_u24 v183, 224, v183")
        E(f"v_and_b32 v184, 3, v{vLANE}")
        E(f"v_lshl_add_u32 v{vTR}, v184, 3, v183")
        E(f"v_add_u32 v{vTR+1}, 0x10000, v{vTR}")
        E(f"v_add_u32 v{vTR+2}, 0x20000, v{vTR}")
        E(f"v_add_u32 v173, s{sS3}, v{vTR}")
        E(f"v_add_u32 v174, 0x10000, v173")
        for r in range(4):
            E(f"v_mov_b32 v{176+r}, s{sONES}")
        E(f"v_and_b32 v{vFA}, 7, v{vLANE}")
        E(f"v_lshlrev_b32 v{vFA}, 2, v{vFA}")
        E(f"v_bfe_u32 v183, v{vLANE}, 3, 1")
        E(f"v_lshl_add_u32 v{vFA}, v183, 7, v{vFA}")
        E(f"s_lshl_b32 s{sA}, s{sPP}, 3")
        E(f"s_lshl_b32 s{sB}, s{sW}, 1")
        E(f"s_add_u32 s{sG}, s{sA}, s{sB}")
        E(f"s_lshl_b32 s{sX}, s{sG}, 7")
        E(f"s_add_u32 s{sX}, s{sX}, {FL_F2*128}")
        E, wq = sprinkle(E, wq, 0, self.o("p_kv0", 30))
        S.extend(E)
        n1 = self.o("w3n1", 4)
        self.put(S, wq[:n1])
        wq = wq[n1:]
        send_f2(S)
        self.put(S, [self.kvp_flags()])
        pit = self.vm_item(f"buffer_load_dword v{vFD}, v{vFA}, {srd(S_WS)}, s{sX} offen sc1")
        np_ = self.o("f2pollpos", 0)
        wq = wq[:len(wq)-np_] + [pit] + wq[len(wq)-np_:]
        CS = 172
        cst = {}

        def cs_reads(i):
            out = []
            for tau in range(7):
                for jh in range(2):
                    b = 28 * (i & 1) + 4 * tau + 2 * jh
                    T = Stream()
                    cst.setdefault(i, []).append(T.ds(f"ds_read_b64_tr_b16 a[{b}:{b+1}], {self.ldsaddr(173, 28672*i + 3584*jh + 32*tau)}"))
                    out.append(T.ops)
            return out

        def cs_mfma(i, nxt, items):
            S.wait(cst[i])
            for tau in range(7):
                b = 28 * (i & 1) + 4 * tau
                it = items.pop(0) if items and tau in (0, 2, 4, 6) else None
                if it:
                    S.extend(it.pre)
                c = "0" if i == 0 else f"a[{CS+4*tau}:{CS+4*tau+3}]"
                S(f"v_mfma_f32_16x16x32_bf16 a[{CS+4*tau}:{CS+4*tau+3}], a[{b}:{b+3}], v[176:179], {c}")
                if it:
                    S.extend(it.post)
                for ops in nxt[2 * tau:2 * tau + 2]:
                    S.extend(ops)

        issued = lambda i: not any(it.tok is self.t_w3[i][-1] for it in wq)
        while not issued(1):
            self.put(S, [wq.pop(0)])
        S.wait(self.t_w3[0])
        for ops in cs_reads(0):
            S.extend(ops)
        self.put(S, wq[:3])
        wq = wq[3:]
        S.wait(self.t_w3[1])
        cs_mfma(0, cs_reads(1), wq)
        self.put(S, wq)
        cs_mfma(1, [], [])
        self.poll_check(S, pit.tok, vFD, vFA, S_WS, f"s{sX}")
        self.stamp(S, "f2seen")

        def last(items):
            S.wait(self.t_w3[2])
            for ops in cs_reads(2):
                S.extend(ops)
            cs_mfma(2, [], items)
        self.colsum_last = last

    def kvp_flags(self):
        it = Item()
        T = it.post
        T.wait(self.t_kvst)
        T(f"s_lshl_b32 s{sC}, s{sCB}, 2")
        T(f"s_add_u32 s{sC}, s{sC}, s{sW}")
        T(f"s_lshl_b32 s{sC}, s{sC}, 7")
        T(f"s_lshl_b32 s{sD}, s{sRB}, 2")
        T(f"s_add_u32 s{sC}, s{sC}, s{sD}")
        T(f"s_add_u32 s{sC}, s{sC}, {FL_KV*128}")
        self.flag_store(T, sC)
        return it

    def w4_reg(self, phi):
        if phi < 64:
            return ("a", 4 * phi)
        if phi == 64:
            return ("v", 232)
        return ("v", 236 + 2 * (phi - 65))

    def w4_items(self, record=True):
        G = []
        tk = {}
        for phi in range(70):
            T = Stream()
            if phi == 0:
                T(f"s_lshl_b32 s{sW4}, s{sCB}, 2")
                T(f"s_add_u32 s{sW4}, s{sW4}, s{sW}")
                T(f"s_mul_i32 s{sW4}, s{sW4}, 71680")
                T(f"s_add_u32 s{sW4}, s{sW4}, {WS_W4P}")
            elif phi % 4 == 0:
                T(f"s_add_u32 s{sW4}, s{sW4}, 4096")
            k, r = self.w4_reg(phi)
            n = 4 if phi <= 64 else 2
            it = self.vm_item(f"buffer_load_dwordx{n} {k}[{r}:{r+n-1}], v{vL16}, {srd(S_WS)}, s{sW4} offen offset:{1024*(phi%4)} {self.ld}")
            it.pre.ops = T.ops
            tk[phi] = it.tok
            G.append(it)
        if record:
            self.t_w4 = tk
        return G

    def gemm3(self):
        S = self.S
        RING, NR, ACC, TMP = 40, 15, 184, 240
        CS = 172
        steps = self.ksteps()
        AR = lambda s, h: RING + 8 * (s % NR) + 4 * h
        AC = lambda h, tau: ACC + 28 * h + 4 * tau
        WB = lambda s, tau: 200 + 28 * (s & 1) + 4 * tau
        S(f"s_mul_i32 s{sB}, s{sG}, 20480")
        self.group_offsets(S, sB, WS_X1)
        ta, loads = {}, {}
        for s, st in enumerate(steps):
            i0 = self.a_items(AR(s, 0), sP0 + st[1], st)
            i1 = self.a_items(AR(s, 1), sS4, st, pre=f"s_add_u32 s{sS4}, s{sP0+st[1]}, 20480" if s % 5 == 0 else None)
            ta[s] = i1[-1].tok
            loads[s] = i0 + i1
        N0 = self.o("g3n0", 3)
        for s in range(N0):
            self.put(S, loads[s])
        S(f"s_mul_i32 s{sA}, s{sW}, 448")
        S(f"v_lshlrev_b32 v250, 4, v{vQ}")
        S(f"v_add_u32 v250, {L_CS3P}, v250")
        S(f"v_add_u32 v249, s{sA}, v250")
        more = loads[N0] + loads[N0 + 1]
        self.colsum_last(more)
        self.put(S, more)
        S(f"s_lshr_b32 s{sA}, s{sG}, 2")
        S(f"s_lshl_b32 s{sA}, s{sA}, 12")
        S(f"s_and_b32 s{sB}, s{sG}, 3")
        S(f"s_lshl_b32 s{sB}, s{sB}, 7")
        S(f"s_add_u32 s{sA}, s{sA}, s{sB}")
        S(f"s_add_u32 s{sS5}, s{sA}, {WS_PS}")
        S(f"v_lshlrev_b32 v248, 10, v{vQ}")
        S(f"v_lshl_add_u32 v248, v{vT}, 3, v248")
        S.wait_all(vm=False, ds=True)
        S.barrier()
        self.stamp(S, "w3bar")
        rdtok = {}

        def reads(s):
            out = []
            rows = steps[s][3]
            for tau in range(7):
                for jh in range(2):
                    T = Stream()
                    t = T.ds(f"ds_read_b64_tr_b16 a[{WB(s,tau)+2*jh}:{WB(s,tau)+2*jh+1}], {self.ldsaddr(vTR, L_W3 + 224*rows[jh] + 32*tau)}")
                    rdtok.setdefault((s, tau), []).append(t)
                    out.append(T.ops)
            return out

        for ops in reads(0):
            S.extend(ops)
        itf = self.vm_item(f"buffer_load_dword v{vFD}, v{vFA}, {srd(S_WS)}, s{sS0} offen sc1")
        T = itf.pre
        T(f"s_lshl_b32 s{sS0}, s{sCB}, 2")
        T(f"s_add_u32 s{sS0}, s{sS0}, s{sW}")
        T(f"s_lshl_b32 s{sS0}, s{sS0}, 7")
        T(f"s_add_u32 s{sS0}, s{sS0}, {FL_P*128}")
        T(f"v_min_u32 v{vFA}, 27, v{vLANE}")
        T(f"v_lshlrev_b32 v{vFA}, 2, v{vFA}")
        t_fc = itf.tok
        itk = self.vm_item(f"buffer_load_dword v{vFD}, v{vFA}, {srd(S_WS)}, s{sS0} offen sc1")
        T = itk.pre
        T(f"s_min_u32 s{sA}, s{sCI}, 19")
        T(f"s_lshl_b32 s{sA}, s{sA}, 2")
        T(f"s_add_u32 s{sA}, s{sA}, s{sW}")
        T(f"s_mul_i32 s{sB}, s{sA}, 3277")
        T(f"s_lshr_b32 s{sB}, s{sB}, 16")
        T(f"s_lshl_b32 s{sA}, s{sCB}, 2")
        T(f"s_add_u32 s{sB}, s{sB}, s{sA}")
        T(f"s_lshl_b32 s{sB}, s{sB}, 7")
        T(f"s_add_u32 s{sS0}, s{sB}, {FL_KV*128}")
        T(f"v_and_b32 v{vFA}, 31, v{vLANE}")
        T(f"v_lshlrev_b32 v{vFA}, 2, v{vFA}")
        its = Item()
        tps = [its.post.vm(f"buffer_load_dwordx2 v[{TMP+4*h+2*e}:{TMP+4*h+2*e+1}], v248, {srd(S_WS)}, s{sS5} offen offset:{512*e + 128*h} sc1")
               for h in range(2) for e in range(2)]
        w4 = self.w4_items()
        queue = []
        NW4 = self.o("g3w4", 10)
        late = list(self.w3late)
        for s in range(N0 + 2, 20):
            queue += [(it, s) for it in loads[s]]
            if late:
                queue.append((late.pop(0), None))
            if s == self.o("g3fc", 16):
                queue.append((itf, None))
            if s == self.o("ssmpos", 8):
                queue.append((self.ssm_touch(), None))
        assert not late
        queue += [(its, None)]
        nA = len(queue)
        queue += [(it, None) for it in w4[:NW4]]
        queue.insert(len(queue) - self.o("kvpollpos", 3), (itk, None))
        qi = 0
        tcs = {}
        checked = False
        places = self.o("g3pl", (1, 5, 10))
        CP = 56
        for s in range(20):
            if s in (11, 15):
                S.wait(self.t_w3[3 if s == 11 else 4])
                S.barrier()
            nxt = reads(s + 1) if s + 1 < 20 else []
            if qi + len(places) > nA and not checked:
                self.poll_check(S, t_fc, vFD, vFA, S_WS, f"s{sS0}")
                checked = True
            if self.o("fine", 0) == 3 and s in (1, 4, 8, 12, 16):
                self.stamp(S, f"g3s{s}")
            S.wait(ta[s], rdtok[s, 3])
            k = 0
            for tau in range(7):
                if tau == 4:
                    S.wait(rdtok[s, 6])
                for h in range(2):
                    it = None
                    if k in places and qi < len(queue) and (queue[qi][1] is None or queue[qi][1] < NR or queue[qi][1] - NR < s):
                        it = queue[qi][0]
                        qi += 1
                        S.extend(it.pre)
                    c = "0" if s == 0 else f"v[{AC(h,tau)}:{AC(h,tau)+3}]"
                    S(f"v_mfma_f32_16x16x32_bf16 v[{AC(h,tau)}:{AC(h,tau)+3}], a[{WB(s,tau)}:{WB(s,tau)+3}], v[{AR(s,h)}:{AR(s,h)+3}], {c}")
                    if it:
                        S.extend(it.post)
                    if k < len(nxt):
                        S.extend(nxt[k])
                    k += 1
            if s >= 12:
                lab = self.label("cs3")
                S(f"s_cmp_lg_u32 s{sW}, {(s + s // 16) % 4}")
                S(f"s_cbranch_scc1 {lab}")
                for tau in range(7):
                    S(f"v_mfma_f32_16x16x32_bf16 a[{CS+4*tau}:{CS+4*tau+3}], a[{WB(s,tau)}:{WB(s,tau)+3}], v[176:179], a[{CS+4*tau}:{CS+4*tau+3}]")
                S(f"{lab}:")
        while qi < len(queue):
            self.put(S, [queue[qi][0]])
            qi += 1
        assert checked
        self.w4i = NW4
        self.poll_check(S, itk.tok, vFD, vFA, S_WS, f"s{sS0}")
        S("s_mov_b32 exec_lo, 0x00010001")
        S("s_mov_b32 exec_hi, 0x00010001")
        for tau in range(7):
            S.ds(f"ds_write_b128 v249, a[{CS+4*tau}:{CS+4*tau+3}] offset:{64*tau}")
        S("s_mov_b64 exec, -1")
        S.wait_all(vm=False, ds=True)
        S.barrier()
        self.stamp(S, "g3mfma")
        for w in range(4):
            for tau in range(7):
                tcs[w, tau] = S.ds(f"ds_read_b128 v[{CP+28*w+4*tau}:{CP+28*w+4*tau+3}], v250 offset:{448*w + 64*tau}")
        conv_side = self.conv_items()
        E = Stream()
        E(f"s_lshl_b32 s{sA}, s{sG}, 4")
        E(f"s_add_u32 s{sA}, s{sA}, s{sJJ}")
        E(f"s_mul_i32 s{sX}, s{sA}, 3584")
        E(f"s_add_u32 s{sX}, s{sX}, {WS_H3}")
        E(f"s_add_u32 s{sY}, s{sX}, {16*3584}")
        E(f"s_mov_b32 s42, s{sX}")
        E.wait(tps)
        for h in range(2):
            a = TMP + 4 * h
            E(f"v_add_f32 v{a}, v{a}, v{a+2}")
            E(f"v_add_f32 v{a+1}, v{a+1}, v{a+3}")
            self.qreduce2(E, a, a + 1, a + 2)
            E(f"v_mul_f32 v{a+2}, s{sINV}, v{a}")
            E(f"v_mul_f32 v{a+1}, s{sINV}, v{a+1}")
            E(f"v_fma_f32 v{a+1}, -v{a+2}, v{a+2}, v{a+1}")
            E(f"v_max_f32 v{a+1}, 0, v{a+1}")
            E(f"v_add_f32 v{a+3}, s{sEPS}, v{a+1}")
            E(f"v_rsq_f32 v{248+h}, v{a+3}")
            E(f"v_sub_f32 v{a+2}, 0, v{a+2}")
            E(f"v_mul_f32 v{a+3}, v{a+3}, v{248+h}")
            self.gelu_consts(E, 248 + h, a)
        E.wait([tcs[w, tau] for w in range(2) for tau in range(7)])
        for p in range(14):
            E(f"v_pk_add_f32 v[{CP+2*p}:{CP+2*p+1}], v[{CP+2*p}:{CP+2*p+1}], v[{CP+28+2*p}:{CP+28+2*p+1}]")
        E.wait(list(tcs.values()))
        for p in range(14):
            E(f"v_pk_add_f32 v[{CP+56+2*p}:{CP+56+2*p+1}], v[{CP+56+2*p}:{CP+56+2*p+1}], v[{CP+84+2*p}:{CP+84+2*p+1}]")
        for p in range(14):
            E(f"v_pk_add_f32 v[{CP+2*p}:{CP+2*p+1}], v[{CP+2*p}:{CP+2*p+1}], v[{CP+56+2*p}:{CP+56+2*p+1}]")
        st = []
        PK = 88
        for h in range(2):
            KA, KB = TMP + 4 * h, TMP + 4 * h + 2
            for p in range(14):
                a = AC(h, 0) + 2 * p
                E(f"v_pk_fma_f32 v[{a}:{a+1}], v[{CP+2*p}:{CP+2*p+1}], v[{KB}:{KB+1}], v[{a}:{a+1}] op_sel_hi:[1,0,1]")
            pk = PK + 16 * h
            if self.o("fine", 0) == 3:
                self.stamp(E, f"e3h{h}")
            for f in range(3):
                self.gelu_pairs(E, [(AC(h, 0) + 8 * f + 2 * p, pk + 4 * f + p) for p in range(4)], 40, KA, KB)
                st.append(E.vm(f"buffer_store_dwordx4 v[{pk+4*f}:{pk+4*f+3}], v{vL16}, {srd(S_WS)}, s{sX+h} offen offset:{1024*f} sc1"))
            self.gelu_pairs(E, [(AC(h, 0) + 24 + 2 * p, pk + 12 + p) for p in range(2)], 40, KA, KB)
            st.append(E.vm(f"buffer_store_dwordx2 v[{pk+12}:{pk+13}], v{vL8}, {srd(S_WS)}, s{sX+h} offen offset:1024 sc1"))
        E, rest = sprinkle(E, conv_side, 0, self.o("p_e3", 170))
        assert not rest
        S.extend(E)
        self.t_h3st = st
        self.w4all = w4
        self.stamp(S, "g3epi")

    def conv_items(self):
        G = []
        self.t_cv = []
        CV = 168
        it = Item()
        T = it.pre
        T(f"s_min_u32 s{sS0}, s{sCI}, 19")
        T(f"s_lshl_b32 s{sS0}, s{sS0}, 2")
        T(f"s_add_u32 s{sS0}, s{sS0}, s{sW}")
        T(f"s_mul_i32 s{sS1}, s{sCB}, 80")
        T(f"s_add_u32 s{sS1}, s{sS0}, s{sS1}")
        T(f"s_lshl_b32 s92, s{sS1}, 12")
        T(f"s_lshl_b32 s93, s{sS1}, 1")
        T(f"s_add_u32 s94, s92, {WS_KVR}")
        T(f"s_mul_i32 s95, s{sW}, {CONV_W}")
        self.mksrd(T, S_M, P_SSMK, 2621440)
        self.mksrd(T, S_K, P_SSMD, 1280)
        T(f"v_add_u32 v{CV}, 4, v{vL16}")
        T(f"v_add_u32 v{CV+1}, 2, v{vL16}")
        T(f"v_mov_b32 v{CV+2}, 0x7ffffff0")
        G.append(it)

        def guarded(fn, it=None):
            it = it or Item()
            T = it.post
            lab = self.label("ncv")
            T(f"s_cmp_ge_u32 s{sCI}, 20")
            T(f"s_cbranch_scc1 {lab}")
            T.optbeg()
            fn(T)
            T.optend()
            T(f"{lab}:")
            return it

        def small(T):
            self.t_cv.append(T.vm(f"buffer_load_dword v{CV+4}, v{vZERO}, {srd(S_M)}, s92 offen"))
            self.t_cv.append(T.vm(f"buffer_load_ushort v{CV+5}, v{vZERO}, {srd(S_K)}, s93 offen"))
        guarded(small, it)

        def pads(T):
            for dst, mask in ((C_H0, "s_mov_b64 exec, 15"), (C_H2, None), (C_KVA + 4096, "s_mov_b32 exec_lo, -1"), (C_KVB + 4096, None)):
                T(f"s_add_u32 m0, s95, {dst}")
                T(mask or "s_nop 0")
                self.t_cv.append(T.vm(f"buffer_load_dwordx4 v{CV+2}, {srd(S_K)}, 0 offen lds"))
            T("s_mov_b64 exec, -1")
        G.append(guarded(pads))
        for i in range(0, 4, 2):
            for (va, sr, so, dst, fl) in ((vL16, S_M, 92, C_H0 + 64, ""), (CV, S_M, 92, C_H2 + 64, ""),
                                          (vL16, S_WS, 94, C_KVA, "sc1"), (CV + 1, S_WS, 94, C_KVB, "sc1")):
                def f(T, va=va, sr=sr, so=so, dst=dst, fl=fl, i=i):
                    for e in range(2):
                        self.t_cv.append(T.vm(f"buffer_load_dwordx4 v{va}, {srd(sr)}, s{so} offen offset:{1024*(i+e)} {fl} lds"))
                it = Item()
                it.pre(f"s_add_u32 m0, s95, {dst}")
                G.append(guarded(f, it))
        return G

    def a4_setup(self, S):
        for k in range(4):
            S(f"s_add_u32 s{sA}, s{sW}, {k}")
            S(f"s_and_b32 s{sA}, s{sA}, 3")
            S(f"s_lshl_b32 s{sB}, s{sRB}, 2")
            S(f"s_add_u32 s{sA}, s{sA}, s{sB}")
            S(f"s_lshl_b32 s{sA}, s{sA}, 2")
            S(f"s_add_u32 s{sA}, s{sA}, s{sW}")
            S(f"s_mul_i32 s{sA}, s{sA}, {4*3584}")
            S(f"s_add_u32 s{36+k}, s{sA}, {WS_H3}")

    def g4_order(self):
        TAIL = 3
        order = [(s, k) for s in range(14 - TAIL) for k in range(4)]
        for k in (1, 2, 3, 0):
            order += [(s, k) for s in range(14 - TAIL, 14)]
        NS = 28
        slot = {sk: (i + 10) % NS for i, sk in enumerate(order)}
        return TAIL, order, NS, slot

    def a4_item(self, s, k, slot):
        r = 120 + 4 * slot[s, k]
        if s < 12:
            b, f = divmod(s, 3)
            return self.vm_item(f"buffer_load_dwordx4 v[{r}:{r+3}], v{vL16}, {srd(S_WS)}, s{sS0} offen offset:{1024*f} {self.ld}",
                                pre=f"s_add_u32 s{sS0}, s{36+k}, {3584*b}")
        if s == 12:
            it = self.vm_item(f"buffer_load_dwordx2 v[{r}:{r+1}], v{vL8}, {srd(S_WS)}, s{36+k} offen offset:1024 {self.ld}",
                              pre=f"s_add_u32 s{sS0}, s{36+k}, 3584")
            it.tok = it.post.vm(f"buffer_load_dwordx2 v[{r+2}:{r+3}], v{vL8}, {srd(S_WS)}, s{sS0} offen offset:1024 {self.ld}")
            return it
        return self.vm_item(f"buffer_load_dwordx2 v[{r}:{r+1}], v{vL8}, {srd(S_WS)}, s{sS0} offen offset:1024 {self.ld}",
                            pre=f"s_add_u32 s{sS0}, s{36+k}, {2*3584}")

    def signal_f3(self, S):
        S.wait(self.t_h3st)
        self.flag_store(S, sY)
        if self.o("selft", 0):
            S(f"v_and_b32 v252, 31, v{vLANE}")
            S(f"v_lshlrev_b32 v252, 7, v252")
            S(f"v_lshrrev_b32 v253, 5, v{vLANE}")
            S(f"v_mul_u32_u24 v253, {16*3584}, v253")
            S(f"v_add_u32 v252, v252, v253")
            S("s_mov_b32 exec_lo, 0x0fffffff")
            S("s_mov_b32 exec_hi, 0x0fffffff")
            S.vm(f"buffer_load_dword v253, v252, {srd(S_WS)}, s42 offen sc1")
            S("s_mov_b64 exec, -1")

    def conv(self):
        S = self.S
        CV = 168
        ACC, KVB, HB = 40, 72, 136
        TAIL, order, NS, slot = self.g4_order()
        NPRE = self.o("a4pre", 18)
        U = Stream()
        U(f"s_lshr_b32 s{sA}, s{sW}, 1")
        U(f"s_lshl_b32 s{sB}, s{sPP}, 1")
        U(f"s_add_u32 s{sA}, s{sA}, s{sB}")
        U(f"s_lshl_b32 s{sA}, s{sA}, 2")
        U(f"s_lshr_b32 s{sB}, s{sJJ}, 2")
        U(f"s_add_u32 s{sA}, s{sA}, s{sB}")
        U(f"s_lshl_b32 s{sA}, s{sA}, 7")
        U(f"s_and_b32 s{sB}, s{sJJ}, 3")
        U(f"s_lshl_b32 s{sB}, s{sB}, 1")
        U(f"s_and_b32 s{sC}, s{sW}, 1")
        U(f"s_add_u32 s{sB}, s{sB}, s{sC}")
        U(f"s_lshl_b32 s{sB}, s{sB}, 2")
        U(f"s_add_u32 s{sA}, s{sA}, s{sB}")
        U(f"s_add_u32 s{sY}, s{sA}, {FL_F3*128}")
        U(f"s_add_u32 s{sX}, s{sU}, {FL_F3*128}")
        U(f"v_and_b32 v{vFA}, 7, v{vLANE}")
        U(f"v_lshlrev_b32 v{vFA}, 2, v{vFA}")
        self.a4_setup(U)
        lb, lj = self.label("noconv"), self.label("join")
        S(f"s_cmp_ge_u32 s{sCI}, 20")
        S(f"s_cbranch_scc1 {lb}")
        prefix = list(S.ops)
        B = Stream()
        B(f"{lb}:")
        B.extend([Op(o.text, "i") for o in U.ops])
        W4C = self.o("w4c", 56)
        w4b = self.w4_items(record=False)[self.w4i:W4C]
        self.put(B, w4b[:8])
        self.signal_f3(B)
        self.put(B, w4b[8:-6])
        tp = self.poll_load(B, vFD, vFA, S_WS, f"s{sX}")
        self.put(B, w4b[-6:])
        self.poll_check(B, tp, vFD, vFA, S_WS, f"s{sX}")
        self.stamp(B, "f3seen")
        self.put(B, [self.a4_item(s, k, slot) for (s, k) in order[:NPRE]])
        marker = Op("; path B", "raw", cost=0)
        resolved = resolve_waits(prefix + [marker] + B.ops)
        idx = [i for i, o in enumerate(resolved) if o is marker][0]
        Bops = [Op(o.text, "resolved") for o in resolved[idx + 1:]]
        S.save_done()
        A1, A2, A3 = 152, 153, 154
        S.wait(self.t_cv)
        S(f"v_lshlrev_b32 v{CV+6}, 16, v{CV+4}")
        S(f"v_lshlrev_b32 v{CV+5}, 16, v{CV+5}")
        S(f"v_add_f32 v{CV+6}, v{CV+6}, v{CV+5}")
        S(f"v_and_b32 v{CV+7}, s{sMASK}, v{CV+4}")
        S(f"v_cvt_pk_bf16_f32 v{CV+6}, v{CV+6}, v{CV+7}")
        S(f"v_mov_b32 v{A1}, s95")
        S("s_mov_b64 exec, 1")
        S.ds(f"ds_write_b32 v{A1}, v{CV+6} offset:{C_H0 + 64}")
        S.ds(f"ds_write_b32 v{A1}, v{CV+6} offset:{C_H2 + 60}")
        S.ds(f"ds_write_b16 v{A1}, v{vZERO} offset:{C_KVB + 4094}")
        S("s_mov_b64 exec, -1")
        self.stamp(S, "cvready")
        KV = lambda u, b: KVB + 32 * (u & 1) + 4 * b
        HH = lambda pi, e: HB + 8 * (pi & 1) + 4 * e
        tkv, th = {}, {}

        def kvreads(u):
            out = []
            for b in range(8):
                T = Stream()
                tkv[u, b] = T.ds(f"ds_read_b128 v[{KV(u,b)}:{KV(u,b)+3}], v{vKV} offset:{3584 - 512*b + 64*u}")
                out.append(T.ops)
            return out

        def hreads(pi):
            u, pr = divmod(pi, 4)
            out = []
            for e, a in ((0, pr), (1, 7 - pr)):
                for jh in range(2):
                    T = Stream()
                    th.setdefault(pi, []).append(
                        T.ds(f"ds_read_b64 v[{HH(pi,e)+2*jh}:{HH(pi,e)+2*jh+1}], v{vH} offset:{64*u + 512*a + 8*jh}"))
                    out.append(T.ops)
            return out

        for ops in kvreads(0) + hreads(0):
            S.extend(ops)
        w4a = self.w4all[self.w4i:W4C]
        self.w4rest = self.w4all[W4C:]
        self.t_a4 = {}
        a4 = []
        for (s, k) in order[:NPRE]:
            it = self.a4_item(s, k, slot)
            self.t_a4[s, k] = it.tok
            a4.append(it)
        P_SIG = self.o("cv_sig", 5)
        nw = len(w4a)
        P_POLL = self.o("cv_poll", max(14, (nw - 4 + 1) // 2))
        P_CHK = max(P_POLL + 2, (nw + 1) // 2)
        queue = list(w4a)
        setup = list(U.ops)
        first = set()
        tp = None
        for u in range(8):
            kvn = kvreads(u + 1) if u < 7 else []
            for pr in range(4):
                pi = 4 * u + pr
                if pi == P_SIG:
                    assert len(U.ops) - len(setup) >= 14
                    self.signal_f3(S)
                if pi == P_POLL:
                    assert not setup
                    tp = self.poll_load(S, vFD, vFA, S_WS, f"s{sX}")
                if pi == P_CHK:
                    assert not queue
                    self.poll_check(S, tp, vFD, vFA, S_WS, f"s{sX}")
                    self.stamp(S, "f3seen")
                    queue = a4
                side = (hreads(pi + 1) if pi < 31 else []) + kvn[2 * pr:2 * pr + 2]
                S.wait(th[pi])
                k = 0
                for e, a in ((0, pr), (1, 7 - pr)):
                    for b in range(8 - a):
                        m = a + b
                        if pr == 0 and e == 0 and b == 6:
                            S.wait(tkv[u, 7])
                        it = None
                        if k in (6, 8) + ((7,) if pi >= P_CHK else ()) and queue:
                            it = queue.pop(0)
                            S.extend(it.pre)
                        c = f"v[{ACC+4*m}:{ACC+4*m+3}]" if m in first else "0"
                        first.add(m)
                        S(f"v_mfma_f32_16x16x32_bf16 v[{ACC+4*m}:{ACC+4*m+3}], v[{KV(u,b)}:{KV(u,b)+3}], v[{HH(pi,e)}:{HH(pi,e)+3}], {c}")
                        if it:
                            S.extend(it.post)
                        elif setup:
                            n = 1 if k < len(side) else 2
                            S.extend(setup[:n])
                            setup = setup[n:]
                        if k < len(side):
                            S.extend(side[k])
                        k += 1
        self.put(S, queue)
        self.stamp(S, "cvmfma")
        S("s_mov_b32 m0, s95")
        for m in range(8):
            for dw in range(2):
                S(f"v_cvt_pk_bf16_f32 v{KVB+2*m+dw}, v{ACC+4*m+2*dw}, v{ACC+4*m+2*dw+1}")
        for r in range(16):
            S.ds(f"ds_write_addtid_b32 v{KVB+r} offset:{256*r}")
        S(f"v_add_u32 v{A1}, s95, v{vL16}")
        rr = [S.ds(f"ds_read_b128 v[{KVB+16+4*k}:{KVB+19+4*k}], v{A1} offset:{1024*k}") for k in range(4)]
        S(f"v_lshrrev_b32 v{A2}, 5, v{vLANE}")
        S(f"v_lshlrev_b32 v{A2}, 9, v{A2}")
        S(f"v_bfe_u32 v{A3}, v{vLANE}, 2, 2")
        S(f"v_lshl_add_u32 v{A2}, v{A3}, 7, v{A2}")
        S(f"v_bfe_u32 v{A3}, v{vLANE}, 4, 1")
        S(f"v_lshl_add_u32 v{A2}, v{A3}, 6, v{A2}")
        S(f"v_and_b32 v{A3}, 3, v{vLANE}")
        S(f"v_lshl_add_u32 v{A2}, v{A3}, 4, v{A2}")
        S(f"s_add_u32 s94, s92, {WS_YT}")
        S.optbeg()
        self.t_yst = []
        for k in range(4):
            S.wait(rr[k])
            self.t_yst.append(S.vm(f"buffer_store_dwordx4 v[{KVB+16+4*k}:{KVB+19+4*k}], v{A2}, {srd(S_WS)}, s94 offen offset:{1024*k} sc1"))
        S.optend()
        S.wait_all(vm=False, ds=True)
        self.stamp(S, "cvdone")
        S(f"s_branch {lj}")
        S.extend(Bops)
        S(f"{lj}:")
        S.restore_done()
        S.wait_all(vm=False, ds=True)

    def gemm4(self):
        S = self.S
        ACC, RING = 40, 120
        TAIL, order, NS, slot = self.g4_order()
        NPRE = self.o("a4pre", 18)
        AC = lambda k, nu: ACC + 20 * k + 4 * nu
        AR = lambda s, k: RING + 4 * slot[s, k]
        ta = self.t_a4
        li = NPRE
        P = Stream()
        P(f"s_mul_i32 s{sB}, s{sW}, 15360")
        P(f"s_add_u32 s{sB}, s{sB}, {L_RB}")
        P(f"v_add_u32 v247, s{sB}, v{vL16}")
        for k in range(1, 4):
            P(f"s_add_u32 s{sA}, s{sW}, {k}")
            P(f"s_and_b32 s{sA}, s{sA}, 3")
            P(f"s_mul_i32 s{sA}, s{sA}, 15360")
            P(f"s_add_u32 s{sA}, s{sA}, {L_RB + 5120*(k-1)}")
            P(f"v_add_u32 v{247+k}, s{sA}, v{vL16}")
        P(f"v_min_u32 v{vFA}, 19, v{vLANE}")
        P(f"v_lshlrev_b32 v{vFA}, 2, v{vFA}")
        P(f"s_lshl_b32 s{sX}, s{sCB}, 2")
        P(f"s_add_u32 s{sX}, s{sX}, s{sW}")
        P(f"s_lshl_b32 s{sX}, s{sX}, 7")
        P(f"s_add_u32 s{sX}, s{sX}, {FL_Y*128}")
        P(f"v_lshrrev_b32 v251, 3, v{vLANE}")
        P(f"v_and_b32 v252, 7, v{vLANE}")
        P(f"v_lshlrev_b32 v252, 4, v252")
        P(f"v_lshl_add_u32 v251, v251, 12, v252")
        P(f"s_mul_i32 s{sY}, s{sCB}, 80")
        P(f"s_mul_i32 s{sB}, s{sW}, 20")
        P(f"s_add_u32 s{sY}, s{sY}, s{sB}")
        P(f"s_lshl_b32 s{sY}, s{sY}, 12")
        P(f"s_lshl_b32 s{sB}, s{sRB}, 7")
        P(f"s_add_u32 s{sY}, s{sY}, s{sB}")
        P(f"s_add_u32 s{sY}, s{sY}, {WS_YT}")
        P(f"s_mul_i32 s{sS4}, s{sW}, 2560")
        P(f"s_lshl_b32 s{sA}, s{sCI}, 2")
        P(f"s_add_u32 s{sA}, s{sA}, s{sW}")
        P(f"s_mul_i32 s{sB}, s{sA}, 3277")
        P(f"s_lshr_b32 s{sB}, s{sB}, 16")
        P(f"s_mul_i32 s{sC}, s{sB}, 20")
        P(f"s_sub_u32 s{sA}, s{sA}, s{sC}")
        P(f"s_lshl_b32 s{sA}, s{sA}, 2")
        P(f"s_lshl_b32 s{sC}, s{sCB}, 2")
        P(f"s_add_u32 s{sB}, s{sB}, s{sC}")
        P(f"s_lshl_b32 s{sB}, s{sB}, 7")
        P(f"s_add_u32 s{sA}, s{sA}, s{sB}")
        P(f"s_add_u32 s{sS3}, s{sA}, {FL_Y*128}")
        P(f"v_lshrrev_b32 v246, 2, v{vLANE}")
        P(f"v_lshlrev_b32 v246, 7, v246")
        P(f"v_and_b32 v252, 3, v{vLANE}")
        P(f"v_lshl_add_u32 v246, v252, 3, v246")
        P(f"s_lshl_b32 s{sA}, s{sW}, 5")
        P(f"s_add_u32 s{sA}, s{sA}, {L_YT}")
        P(f"v_add_u32 v246, s{sA}, v246")
        setup = P.ops
        XU, U, X1U, Y = 160, 180, 200, vXT
        Q1 = Stream()
        for p in range(10):
            Q1(f"v_lshlrev_b32 v{XU+2*p}, 16, v{vXT+p}")
            Q1(f"v_and_b32 v{XU+2*p+1}, s{sMASK}, v{vXT+p}")
        Q2 = Stream()
        for p in range(20):
            Q2(f"v_fma_f32 v{U+p}, v{XU+p}, v{vMR+1}, v{vMR}")
        Q3 = Stream()
        for p in range(10):
            Q3(f"v_lshlrev_b32 v{X1U+2*p}, 16, v{vX1+p}")
            Q3(f"v_and_b32 v{X1U+2*p+1}, s{sMASK}, v{vX1+p}")
        Q4 = Stream()
        for p in range(10):
            Q4(f"v_lshlrev_b32 v{vX1}, 16, v{Y+p}")
            Q4(f"v_and_b32 v{vX1+1}, s{sMASK}, v{Y+p}")
            Q4(f"v_mul_f32 v{U+2*p}, v{U+2*p}, v{vX1}")
            Q4(f"v_mul_f32 v{U+2*p+1}, v{U+2*p+1}, v{vX1+1}")
        shadow = []
        first = set()
        t_fy = None
        t_y = []
        wr = []
        YS, FYI, FYC, YB = self.o("g4ys", 12), self.o("g4fyi", 33), self.o("g4fyc", 40), self.o("g4yb", 47)
        self.stamp(S, "g4start")
        for i, (s, k) in enumerate(order):
            if i == YS:
                ny = self.label("noy")
                S(f"s_cmp_ge_u32 s{sCI}, 20")
                S(f"s_cbranch_scc1 {ny}")
                S.optbeg()
                S.wait(self.t_yst)
                self.flag_store(S, sS3)
                S.optend()
                S(f"{ny}:")
            if i == FYI:
                t_fy = self.poll_load(S, 253, vFA, S_WS, f"s{sX}")
            if i == FYC:
                self.poll_check(S, t_fy, 253, vFA, S_WS, f"s{sX}")
                for j in range(3):
                    it = self.dma_item(251, S_WS, f"s{sY}", sS4, L_YT + 1024 * j, flags="sc1", mask="s_mov_b32 exec_hi, 0" if j == 2 else None,
                                       pre=f"s_add_u32 s{sY}, s{sY}, {8*4096}" if j else None)
                    t_y.append(it.tok)
                    self.put(S, [it])
            if i == 33:
                shadow += Q1.ops
            if i == 38:
                shadow += Q2.ops
            if i == 43:
                shadow += Q3.ops
            if i == YB:
                S.wait(t_y)
                S.barrier()
                ty = [S.ds(f"ds_read_b64_tr_b16 v[{Y+2*tau}:{Y+2*tau+1}], v246 offset:{2048*tau}") for tau in range(5)]
            if i == YB + 2:
                W_ = Stream()
                W_.wait(ty)
                shadow += W_.ops + Q4.ops
            if self.o("fine", 0) == 4 and i in (4, 12, 20, 30, 40, 48):
                self.stamp(S, f"g4p{i}")
            S.wait(ta[s, k], self.t_w4[5 * s + 4])
            for nu in range(5):
                phi = 5 * s + nu
                kk, r = self.w4_reg(phi)
                it = None
                if nu == 1 and li < len(order) and li - i <= NS - 1:
                    it = self.a4_item(*order[li], slot)
                    ta[order[li]] = it.tok
                    li += 1
                    S.extend(it.pre)
                elif nu == 3 and self.w4rest and i % self.o("w4every", 2) == 0:
                    it = self.w4rest.pop(0)
                    S.extend(it.pre)
                c = f"v[{AC(k,nu)}:{AC(k,nu)+3}]" if (k, nu) in first else "0"
                first.add((k, nu))
                if s < 13:
                    S(f"v_mfma_f32_16x16x32_bf16 v[{AC(k,nu)}:{AC(k,nu)+3}], {kk}[{r}:{r+3}], v[{AR(s,k)}:{AR(s,k)+3}], {c}")
                else:
                    S(f"v_mfma_f32_16x16x16_bf16 v[{AC(k,nu)}:{AC(k,nu)+3}], {kk}[{r}:{r+1}], v[{AR(s,k)}:{AR(s,k)+1}], {c}")
                if it:
                    S.extend(it.post)
                elif setup:
                    S.extend(setup[:2])
                    setup = setup[2:]
                elif wr and nu in (2, 4) and s >= 14 - TAIL:
                    S.extend(wr.pop(0))
                elif shadow:
                    n = 1 if nu == 4 else 2
                    if shadow[0].kind == "wait":
                        n += 1
                    S.extend(shadow[:n])
                    shadow = shadow[n:]
            if s == 13 and k != 0:
                for nu in range(5):
                    T = Stream()
                    T.ds(f"ds_write_b128 v{247+k}, v[{AC(k,nu)}:{AC(k,nu)+3}] offset:{1024*nu}")
                    wr.append(T.ops)
            if i == YS - 1:
                assert not setup
        assert li == len(order)
        for g in wr:
            S.extend(g)
        S.extend(shadow)
        self.stamp(S, "g4mfma")
        S.wait_all(vm=False, ds=True)
        S.barrier()
        rd = {}
        RD = 60
        for j in range(3):
            for nu in range(5):
                rd[j, nu] = S.ds(f"ds_read_b128 v[{RD+20*j+4*nu}:{RD+20*j+4*nu+3}], v247 offset:{5120*j + 1024*nu}")
        for p in range(10):
            S(f"v_pk_add_f32 v[{ACC+2*p}:{ACC+2*p+1}], v[{ACC+2*p}:{ACC+2*p+1}], v[{X1U+2*p}:{X1U+2*p+1}]")
        S(f"v_mul_u32_u24 v248, 160, v{vT}")
        S(f"v_lshl_add_u32 v248, v{vQ}, 3, v248")
        S(f"s_add_u32 s{sS4}, s{sS4}, {L_OUT}")
        S(f"v_add_u32 v248, s{sS4}, v248")
        S(f"v_add_u32 v249, s{sS4}, v{vL16}")
        S(f"s_mul_i32 s{sA}, s{sT0}, 1280")
        S(f"s_add_u32 s{sA}, s{sA}, s{sCB160}")
        for j in range(3):
            S.wait([rd[j, nu] for nu in range(5)])
            for p in range(10):
                S(f"v_pk_add_f32 v[{ACC+2*p}:{ACC+2*p+1}], v[{ACC+2*p}:{ACC+2*p+1}], v[{RD+20*j+2*p}:{RD+20*j+2*p+1}]")
        T0 = RING
        for p in range(10):
            S(f"v_pk_mul_f32 v[{T0+2*p}:{T0+2*p+1}], v[{ACC+2*p}:{ACC+2*p+1}], s[{sNL2E}:{sNL2E+1}] op_sel_hi:[1,0]")
        for p in range(20):
            S(f"v_exp_f32 v{T0+p}, v{T0+p}")
        for p in range(10):
            S(f"v_pk_mul_f32 v[{ACC+2*p}:{ACC+2*p+1}], v[{ACC+2*p}:{ACC+2*p+1}], v[{U+2*p}:{U+2*p+1}]")
            S(f"v_pk_add_f32 v[{T0+2*p}:{T0+2*p+1}], v[{T0+2*p}:{T0+2*p+1}], 1.0 op_sel_hi:[1,0]")
        for p in range(20):
            S(f"v_rcp_f32 v{T0+p}, v{T0+p}")
        for p in range(10):
            S(f"v_pk_fma_f32 v[{T0+2*p}:{T0+2*p+1}], v[{T0+2*p}:{T0+2*p+1}], v[{ACC+2*p}:{ACC+2*p+1}], v[{XU+2*p}:{XU+2*p+1}]")
        O = 100
        for tau in range(5):
            for e in range(2):
                p = 2 * tau + e
                S(f"v_cvt_pk_bf16_f32 v{O+p}, v{T0+2*p}, v{T0+2*p+1}")
            S.ds(f"ds_write_b64 v248, v[{O+2*tau}:{O+2*tau+1}] offset:{32*tau}")
        rr = []
        for j in range(3):
            if j == 2:
                S("s_mov_b32 exec_hi, 0")
            rr.append(S.ds(f"ds_read_b128 v[{140+4*j}:{143+4*j}], v249 offset:{1024*j}"))
        S("s_mov_b64 exec, -1")
        for j in range(3):
            S.wait(rr[j])
            if j == 2:
                S("s_mov_b32 exec_hi, 0")
            S.vm(f"buffer_store_dwordx4 v[{140+4*j}:{143+4*j}], v{vNAT+j}, {srd(S_OUT)}, s{sA} offen {self.o('outfl', '')}")
        S("s_mov_b64 exec, -1")
        self.stamp(S, "end")

    def finish(self):
        S = self.S
        if self.diag:
            S.wait_all()
            S("s_memrealtime s[90:91]")
            S.wait_all(vm=False, ds=True)
            S("v_writelane_b32 v39, s88, 30")
            S("v_writelane_b32 v39, s90, 31")
            S(f"s_lshl_b32 s{sA}, s{sRB}, 3")
            S(f"s_add_u32 s{sA}, s{sA}, s{sCB}")
            S(f"s_lshl_b32 s{sA}, s{sA}, 2")
            S(f"s_add_u32 s{sA}, s{sA}, s{sW}")
            S(f"s_lshl_b32 s{sA}, s{sA}, 7")
            S(f"s_add_u32 s{sA}, s{sA}, {WS_STAMP}")
            S(f"v_lshlrev_b32 v40, 2, v{vLANE}")
            S("s_mov_b32 exec_hi, 0")
            S.vm(f"buffer_store_dword v39, v40, {srd(S_WS)}, s{sA} offen")
            S.wait_all()
        S("L_end:")
        S("s_endpgm")

    def build(self):
        phases = [self.prologue, self.gemm1, self.window1, self.gemm2, self.gemm3, self.conv, self.gemm4]
        for ph in phases:
            self.S.comment("==== " + ph.__name__)
            ph()
            if self.stop == ph.__name__:
                self.S.wait_all()
                break
        self.finish()
        ops = resolve_waits(self.S.ops)
        ops, npad = pad_hazards(ops)
        return ops, npad


HEADER = """; Fused persistent kernel: x + (LN(x) * H3conv(k,v)) * silu(S-MLP mixer(LN(x)))
; @launch grid=(256,1,1) block=(256,1,1) lds=163840
.amdgcn_target "amdgcn-amd-amdhsa--gfx950"
.text
.globl {name}
.p2align 8
.type {name},@function
{name}:
"""
FOOTER = """
.fill 4096, 4, 0xbf800000
s_endpgm
.section .rodata,"a"
.p2align 6
.amdhsa_kernel {name}
  .amdhsa_next_free_vgpr 512
  .amdhsa_next_free_sgpr 102
  .amdhsa_accum_offset 256
  .amdhsa_group_segment_fixed_size 0
  .amdhsa_kernarg_size 112
  .amdhsa_user_sgpr_count 2
  .amdhsa_user_sgpr_kernarg_segment_ptr 1
  .amdhsa_system_sgpr_workgroup_id_x 1
  .amdhsa_float_denorm_mode_32 3
.end_amdhsa_kernel
"""


def generate(**kw):
    g = Gen(**kw)
    ops, npad = g.build()
    txt = HEADER.format(name=NAME) + render(ops) + FOOTER.format(name=NAME)
    return txt, g, npad


if __name__ == "__main__":
    import argparse
    ap = argparse.ArgumentParser()
    ap.add_argument("-o", default="recurrent_scan__ssm_conv_h3__mixer_s_mlp__prompt.s")
    ap.add_argument("--diag", action="store_true")
    ap.add_argument("--stop", default=None)
    ap.add_argument("--opt", default="")
    a = ap.parse_args()
    txt, g, npad = generate(diag=a.diag, stop=a.stop, **eval("dict(%s)" % a.opt))
    open(a.o, "w").write(txt)
    print("written", a.o, "lines", txt.count("\n"), "nop pads", npad, "stamps", g.stamp_names)
```

```python
import sys, os, struct
sys.path.insert(0, os.path.dirname(os.path.abspath(__file__)))
from asmlib import *

NAME = "recurrent_scan__ssm_conv_h3__mixer_s_mlp__prompt_kernel"

WS_FLAGS = 0
WS_H = 0x10000
WS_ST1 = 0x290000
WS_X1 = 0x2B0000
WS_PS = 0x530000
WS_H3 = 0x550000
WS_KVR = 0xC50000
WS_YT = 0xEE0000
WS_W4P = 0x1160000
WS_STAMP = 0x1390000
WS_SIZE = 0x1400000
FL_F1, FL_F2, FL_F3, FL_KV, FL_P, FL_Y = 0, 128, 256, 384, 416, 448
NINIT = 16

LDS_SIZE = 163840
L_W1 = 0
L_XR = 102400
XR_W = 12288
O_CS1 = 11520
L_KVT = 151552
L_W2 = 0
L_W3 = 0
L_CS3P = 143360
L_CS3F = 145408
CONV_W = 17920
C_H0, C_H2, C_KVA, C_KVB = 0, 4224, 8448, 13088
L_RB = 73728
L_YT = 143360
L_OUT = 153600

S_X, S_W, S_WS, S_K, S_V, S_M, S_OUT, S_DBG = 4, 8, 12, 16, 20, 24, 28, 32
P_Q, P_K, P_V, P_SK, P_SSMK, P_SSMD, P_W1, P_W2, P_W3, P_W4, P_OUT, P_DBG, P_WS = 36, 38, 40, 42, 44, 46, 50, 52, 54, 56, 58, 60, 62
sW, sRB, sCB, sT0 = 64, 65, 66, 67
sGC = 68
sNL2E, sINV, sEPS, sMASK, sONES = 70, 71, 72, 73, 74
sCB160 = 75
sA, sB, sC, sD = 76, 77, 78, 79
sE, sF, sG, sH = 48, 49, 3, 2
sR5, sR4, sCI = 80, 81, 81
sS0, sS1, sS2, sS3, sS4, sS5 = 82, 83, 84, 85, 86, 87
sP0 = 92
sJJ, sPP, sU, sW4 = 96, 97, 98, 99
sX, sY = 100, 101

vLANE, vL16, vT, vL8 = 0, 1, 2, 3
vNAT = 4
vTR = 9
vXT = 12
vX1 = 22
vMR = 32
vONE = 34
vFA = 35
vFD = 36
vQ = 37
vZERO = 38
vH, vKV = 254, 255


def srd(reg):
    return f"s[{reg}:{reg+3}]"


def f2u(x):
    return struct.unpack("<I", struct.pack("<f", x))[0]


class Item:
    def __init__(self):
        self.pre = Stream()
        self.post = Stream()

    def flat(self):
        return self.pre.ops + self.post.ops


def tcost(op):
    if op.text.startswith("v_mfma"):
        return 16
    return op.cost


def sprinkle(main, items, start, every):
    out = []
    acc, nxt, gi, guard = 0, start, 0, 0
    ops = main.ops
    for i, op in enumerate(ops):
        t = op.text
        plain = op.kind == "i" and not t.startswith("s_") and not t.startswith("v_cmp") and guard == 0
        if plain and gi < len(items) and acc >= nxt:
            it = items[gi]
            gi += 1
            out.extend(it.pre.ops)
            out.append(op)
            out.extend(it.post.ops)
            acc += tcost(op) + sum(tcost(o) for o in it.flat())
            nxt += every
            continue
        if op.kind == "optbeg":
            guard += 1
        if op.kind == "optend":
            guard -= 1
        if t.startswith("s_mov_b64 exec") or t.startswith("s_mov_b32 exec_lo") or t.startswith("s_mov_b32 exec_hi, 0"):
            if t == "s_mov_b64 exec, -1":
                guard -= 1
            elif not t.startswith("s_mov_b32 exec_hi, 0x"):
                guard += 1
        out.append(op)
        acc += tcost(op)
    s = Stream()
    s.ops = out
    return s, items[gi:]


class Gen:
    def __init__(self, diag=False, stop=None, ld="sc1", mapping="4x8", rot=False, **opt):
        self.diag = diag
        self.stop = stop
        self.S = Stream()
        self.nstamp = 0
        self.nlabel = 0
        self.ld = ld
        self.mapping = mapping
        self.rot = rot
        self.opt = opt
        self.stamp_names = []

    def o(self, name, default):
        return self.opt.get(name, default)

    def label(self, base):
        self.nlabel += 1
        return f"L_{base}_{self.nlabel}"

    def stamp(self, S, name):
        if self.o("padat", None) == name:
            S("s_memrealtime s[90:91]")
            S.wait_all(vm=False, ds=True)
        if not self.diag or name in self.o("nostamp", ()):
            return
        if name in self.stamp_names:
            k = self.stamp_names.index(name)
        else:
            k = self.nstamp
            self.nstamp += 1
            self.stamp_names.append(name)
        S("s_memrealtime s[90:91]" if self.o("rt", 0) else "s_memtime s[90:91]")
        S.wait_all(vm=False, ds=True)
        S(f"v_writelane_b32 v39, s90, {k}")

    def mksrd(self, S, reg, ptr, size):
        S(f"s_mov_b64 s[{reg}:{reg+1}], s[{ptr}:{ptr+1}]")
        S(f"s_mov_b32 s{reg+2}, {size}")
        S(f"s_mov_b32 s{reg+3}, 0x20000")

    def ldsaddr(self, basereg, off):
        k = off // 65536
        return f"v{basereg+k} offset:{off - 65536*k}"

    def dma_item(self, vaddr, sr, soff, m0reg, m0c, off=0, flags="", mask=None, pre=None):
        it = Item()
        if pre:
            it.pre(pre)
        it.pre(f"s_add_u32 m0, s{m0reg}, {m0c}")
        o = f" offset:{off}" if off else ""
        fl = f" {flags}" if flags else ""
        if mask:
            it.post(mask)
        it.tok = it.post.vm(f"buffer_load_dwordx4 v{vaddr}, {srd(sr)}, {soff} offen{o}{fl} lds")
        if mask:
            it.post("s_mov_b64 exec, -1")
        return it

    def vm_item(self, text, pre=None, mask=None):
        it = Item()
        if pre:
            it.pre(pre)
        if mask:
            it.post(mask)
        it.tok = it.post.vm(text)
        if mask:
            it.post("s_mov_b64 exec, -1")
        return it

    @staticmethod
    def put(S, items):
        for it in items:
            S.extend(it.flat())

    def divpat(self, S, dst, j, div, stride, tmp, dst2=None):
        magic = (1 << 16) // div + 1
        assert all(((p * magic) >> 16) == p // div for p in range(64 * j, 64 * j + 64))
        a, b, c = tmp, tmp + 1, tmp + 2
        S(f"v_add_u32 v{a}, {64*j}, v{vLANE}")
        S(f"v_mul_u32_u24 v{b}, {magic}, v{a}")
        S(f"v_lshrrev_b32 v{b}, 16, v{b}")
        S(f"v_mul_u32_u24 v{c}, {div}, v{b}")
        S(f"v_sub_u32 v{a}, v{a}, v{c}")
        S(f"v_lshlrev_b32 v{a}, 4, v{a}")
        S(f"v_mul_u32_u24 v{c}, {stride}, v{b}")
        S(f"v_add_u32 v{dst}, v{c}, v{a}")
        if dst2 is not None:
            S(f"v_bfe_u32 v{c}, v{b}, 2, 2")
            S(f"v_lshlrev_b32 v{c}, 3, v{c}")
            S(f"v_and_b32 v{dst2}, 3, v{b}")
            S(f"v_add_u32 v{c}, v{c}, v{dst2}")
            S(f"v_lshrrev_b32 v{b}, 4, v{b}")
            S(f"v_lshl_add_u32 v{c}, v{b}, 2, v{c}")
            S(f"v_mul_u32_u24 v{c}, {stride}, v{c}")
            S(f"v_add_u32 v{dst2}, v{c}, v{a}")

    def qreduce2(self, S, a, b, t):
        S(f"v_permlane16_swap_b32 v{a}, v{b}")
        S(f"v_add_f32 v{a}, v{a}, v{b}")
        S(f"v_mov_b32 v{t}, v{a}")
        S(f"v_permlane32_swap_b32 v{a}, v{t}")
        S(f"v_add_f32 v{a}, v{a}, v{t}")
        S(f"v_mov_b32 v{b}, v{a}")
        S(f"v_permlane16_swap_b32 v{a}, v{b}")

    def gelu_pairs(self, S, pairs, tmp, KA, KB, width=4):
        for i in range(0, len(pairs), width):
            ch = pairs[i:i + width]
            T = [tmp + 2 * k for k in range(len(ch))]
            for (z, d), t in zip(ch, T):
                S(f"v_pk_mul_f32 v[{t}:{t+1}], v[{z}:{z+1}], v[{z}:{z+1}]")
            for (z, d), t in zip(ch, T):
                S(f"v_pk_fma_f32 v[{t}:{t+1}], v[{t}:{t+1}], v[{KA}:{KA+1}], v[{KA}:{KA+1}] op_sel:[0,0,1] op_sel_hi:[1,0,1]")
            for (z, d), t in zip(ch, T):
                S(f"v_pk_mul_f32 v[{t}:{t+1}], v[{t}:{t+1}], v[{z}:{z+1}]")
            for (z, d), t in zip(ch, T):
                S(f"v_exp_f32 v{t}, v{t}")
                S(f"v_exp_f32 v{t+1}, v{t+1}")
            for (z, d), t in zip(ch, T):
                S(f"v_pk_fma_f32 v[{t}:{t+1}], v[{t}:{t+1}], v[{KB}:{KB+1}], v[{KB}:{KB+1}] op_sel:[0,1,1] op_sel_hi:[1,1,1]")
            for (z, d), t in zip(ch, T):
                S(f"v_rcp_f32 v{t}, v{t}")
                S(f"v_rcp_f32 v{t+1}, v{t+1}")
            for (z, d), t in zip(ch, T):
                S(f"v_pk_mul_f32 v[{t}:{t+1}], v[{t}:{t+1}], v[{z}:{z+1}]")
            for (z, d), t in zip(ch, T):
                S(f"v_cvt_pk_bf16_f32 v{d}, v{t}, v{t+1}")

    def gelu_consts(self, S, r, KA):
        S(f"v_mul_f32 v{KA}, v{r}, v{r}")
        S(f"v_mul_f32 v{KA+1}, s{sGC+1}, v{r}")
        S(f"v_mul_f32 v{KA}, v{KA}, v{r}")
        S(f"v_mul_f32 v{KA}, s{sGC}, v{KA}")

    def poll_load(self, S, vdst, vaddr, sr, soff="0"):
        return S.vm(f"buffer_load_dword v{vdst}, v{vaddr}, {srd(sr)}, {soff} offen sc1")

    def poll_check(self, S, tok, vdst, vaddr, sr, soff="0", val=1, cmp="ne"):
        lp, dn = self.label("spin"), self.label("ok")
        S.wait(tok)
        S(f"v_cmp_{cmp}_u32 vcc, {val}, v{vdst}")
        S(f"s_cbranch_vccz {dn}")
        S.optbeg()
        S(f"s_mov_b32 s{sD}, 0")
        S(f"{lp}:")
        self.poll_load(S, vdst, vaddr, sr, soff)
        S(f"s_add_u32 s{sD}, s{sD}, 1")
        S(f"s_cmp_gt_u32 s{sD}, 400000")
        S(f"s_cbranch_scc1 {dn}")
        S.wait_all(vm=True, ds=False)
        S(f"v_cmp_{cmp}_u32 vcc, {val}, v{vdst}")
        S(f"s_cbranch_vccnz {lp}")
        S.optend()
        S(f"{dn}:")

    def flag_store(self, S, sreg):
        S("s_mov_b64 exec, 1")
        t = S.vm(f"buffer_store_dword v{vONE}, v{vZERO}, {srd(S_WS)}, s{sreg} offen sc1")
        S("s_mov_b64 exec, -1")
        return t

    def mod5(self, S, dst, src, add, tmp):
        S(f"s_add_u32 s{dst}, s{src}, {add}")
        S(f"s_cmp_ge_u32 s{dst}, 5")
        S(f"s_cselect_b32 s{tmp}, 5, 0")
        S(f"s_sub_u32 s{dst}, s{dst}, s{tmp}")

    def prologue(self):
        S = self.S
        S("s_cmp_ge_u32 s2, 256")
        S("s_cbranch_scc1 L_end")
        S("s_load_dwordx16 s[36:51], s[0:1], 0")
        S("s_load_dwordx8 s[52:59], s[0:1], 64")
        S("s_load_dwordx4 s[60:63], s[0:1], 96")
        if self.diag or self.o("padat", None):
            S("s_memrealtime s[88:89]")
            S("v_mov_b32 v39, 0")
        S(f"v_lshrrev_b32 v190, 6, v0")
        S(f"v_and_b32 v{vLANE}, 63, v0")
        S(f"v_readfirstlane_b32 s{sW}, v190")
        S("s_getpc_b64 s[82:83]")
        S(f"s_lshr_b32 s{sB}, s2, 3")
        S(f"s_mul_i32 s{sA}, s{sB}, 11")
        S(f"s_mul_i32 s{sC}, s{sW}, 3")
        S(f"s_add_u32 s{sA}, s{sA}, s{sC}")
        S(f"v_add_u32 v190, s{sA}, v{vLANE}")
        S(f"v_lshlrev_b32 v190, 7, v190")
        S("s_mov_b64 exec, 7")
        S.vm("global_load_dword v191, v190, s[82:83]")
        S("s_mov_b64 exec, -1")
        S(f"s_and_b32 s{sA}, s2, 7")
        if self.mapping == "4x8":
            S(f"s_and_b32 s{sCB}, s{sB}, 7")
            S(f"s_lshr_b32 s{sB}, s{sB}, 3")
            S(f"s_lshl_b32 s{sA}, s{sA}, 2")
            S(f"s_add_u32 s{sRB}, s{sA}, s{sB}")
        else:
            S(f"s_and_b32 s{sCB}, s{sB}, 3")
            S(f"s_and_b32 s{sC}, s{sA}, 1")
            S(f"s_lshl_b32 s{sC}, s{sC}, 2")
            S(f"s_add_u32 s{sCB}, s{sCB}, s{sC}")
            S(f"s_lshr_b32 s{sB}, s{sB}, 2")
            S(f"s_lshr_b32 s{sA}, s{sA}, 1")
            S(f"s_lshl_b32 s{sA}, s{sA}, 3")
            S(f"s_add_u32 s{sRB}, s{sA}, s{sB}")
        S(f"v_and_b32 v{vT}, 15, v{vLANE}")
        S(f"v_lshrrev_b32 v{vQ}, 4, v{vLANE}")
        S(f"s_lshr_b32 s{sA}, s{sCB}, 2")
        S(f"s_add_u32 s{sA}, s{sA}, 1")
        S(f"s_sub_u32 s{sB}, 0, s{sA}")
        S(f"s_bitcmp1_b32 s{sCB}, 1")
        S(f"s_cselect_b32 s{sA}, s{sA}, s{sB}")
        S(f"s_lshl_b32 s{sT0}, s{sRB}, 6")
        S(f"s_lshl_b32 s{sB}, s{sW}, 4")
        S(f"s_add_u32 s{sT0}, s{sT0}, s{sB}")
        S(f"s_add_u32 s{sA}, s{sA}, s{sT0}")
        S(f"v_add_u32 v164, s{sA}, v{vQ}")
        S(f"v_mul_i32_i24 v164, 1280, v164")
        S(f"v_xor_b32 v165, v{vT}, v{vQ}")
        S(f"v_lshlrev_b32 v165, 4, v165")
        S(f"v_add_u32 v160, v164, v165")
        for i in range(1, 4):
            S(f"v_xor_b32 v{160+i}, {64*i}, v160")
            S(f"v_add_u32 v{160+i}, {5120*i}, v{160+i}")
        S(f"s_mul_i32 s{sY}, s{sW}, {XR_W}")
        S(f"s_add_u32 s{sY}, s{sY}, {L_XR}")
        S(f"s_mul_i32 s{sCB160}, s{sCB}, 160")
        if self.o("rot1", 1):
            S(f"s_add_u32 s{sA}, s{sRB}, s{sCB}")
            S(f"s_mul_i32 s{sB}, s{sA}, 52429")
            S(f"s_lshr_b32 s{sB}, s{sB}, 18")
            S(f"s_mul_i32 s{sB}, s{sB}, 5")
            S(f"s_sub_u32 s{sR5}, s{sA}, s{sB}")
        else:
            S(f"s_mov_b32 s{sR5}, 0")
        if self.o("cimix", 1):
            S(f"s_lshr_b32 s{sA}, s{sRB}, 3")
            S(f"s_and_b32 s{sB}, s{sRB}, 7")
            S(f"s_lshl_b32 s{sC}, s{sB}, 2")
            S(f"s_lshr_b32 s{sC}, 0x76435210, s{sC}")
            S(f"s_and_b32 s{sC}, s{sC}, 15")
            S(f"s_mul_i32 s{sB}, s{sA}, 5")
            S(f"s_add_u32 s{sB}, s{sB}, s{sC}")
            S(f"s_mul_i32 s{sA}, s{sA}, 3")
            S(f"s_add_u32 s{sA}, s{sA}, s{sC}")
            S(f"s_add_u32 s{sA}, s{sA}, 15")
            S(f"s_cmp_lt_u32 s{sC}, 5")
            S(f"s_cselect_b32 s{sCI}, s{sB}, s{sA}")
        else:
            S(f"s_mov_b32 s{sCI}, s{sRB}")
        S(f"v_lshlrev_b32 v{vL16}, 4, v{vLANE}")
        S(f"s_cmp_eq_u32 s{sW}, 3")
        S(f"s_cselect_b32 s{sG}, s2, {NINIT}")
        S("s_waitcnt lgkmcnt(0)")
        self.stamp(S, "kernarg")
        self.mksrd(S, S_X, P_Q, 2621440)
        self.t_x, self.t_w1 = {}, {}
        self.xitems = {g: self.x_group(g) for g in range(5)}
        self.w1items = {st: self.w1_stage(st) for st in range(5)}
        self.put(S, self.xitems[0])
        self.mksrd(S, S_W, P_W1, 819200)
        for j in range(5):
            self.divpat(S, vNAT + j, j, 10, 1280, 180, dst2=168 + j)
            self.put(S, [self.w1items[0][j]])
        self.mksrd(S, S_WS, P_WS, WS_SIZE)
        self.mksrd(S, S_DBG, P_DBG, 256)
        skip = self.label("noinit")
        S(f"s_cmp_ge_u32 s{sG}, {NINIT}")
        S(f"s_cbranch_scc1 {skip}")
        S.optbeg()
        for r in range(4):
            S(f"v_mov_b32 v{192+r}, 0")
        S(f"s_lshl_b32 s{sB}, s{sG}, 12")
        self.t_init = [S.vm(f"buffer_store_dwordx4 v[192:195], v{vL16}, {srd(S_WS)}, s{sB} offen offset:{1024*i} sc1") for i in range(4)]
        S.optend()
        S(f"{skip}:")
        S(f"v_lshlrev_b32 v196, 7, v{vLANE}")
        if self.o("touch", 1):
            self.mksrd(S, S_M, P_W2, 819200)
            S(f"s_mul_i32 s{sA}, s2, {25*128}")
            S(f"s_mul_i32 s{sB}, s{sW}, {7*128}")
            S(f"s_add_u32 s{sA}, s{sA}, s{sB}")
            S("s_mov_b64 exec, 0x7f")
            S.vm(f"buffer_load_dword v197, v196, {srd(S_M)}, s{sA} offen")
            S("s_mov_b64 exec, -1")
            S(f"s_mul_i32 s{sX}, s2, {68*128}")
            S(f"s_mul_i32 s{sB}, s{sW}, {17*128}")
            S(f"s_add_u32 s{sX}, s{sX}, s{sB}")
        self.mksrd(S, S_K, P_K, 2621440)
        self.mksrd(S, S_V, P_V, 2621440)
        EX = Stream()
        if self.o("touch", 1) and self.o("w3del", 0):
            lab = self.label("now3")
            EX(f"s_cmp_lt_u32 s{sRB}, 24")
            EX(f"s_cbranch_scc1 {lab}")
            EX.optbeg()
            self.mksrd(EX, S_M, P_W3, 2211840)
            EX(f"s_sub_u32 s{sA}, s{sRB}, 24")
            EX(f"s_lshl_b32 s{sA}, s{sA}, 3")
            EX(f"s_add_u32 s{sA}, s{sA}, s{sCB}")
            EX(f"s_lshl_b32 s{sA}, s{sA}, 2")
            EX(f"s_add_u32 s{sA}, s{sA}, s{sW}")
            EX(f"s_mul_i32 s{sA}, s{sA}, {68*128}")
            EX.vm(f"buffer_load_dword v197, v196, {srd(S_M)}, s{sA} offen")
            EX(f"s_add_u32 s{sA}, s{sA}, {64*128}")
            EX("s_mov_b64 exec, 15")
            EX.vm(f"buffer_load_dword v197, v196, {srd(S_M)}, s{sA} offen")
            EX("s_mov_b64 exec, -1")
            EX.optend()
            EX(f"{lab}:")
        elif self.o("touch", 1):
            self.mksrd(EX, S_M, P_W3, 2211840)
            EX("s_mov_b64 exec, 0x1ffff")
            EX.vm(f"buffer_load_dword v197, v196, {srd(S_M)}, s{sX} offen")
            EX("s_mov_b64 exec, -1")
        self.mksrd(EX, S_M, P_SK, 5120)
        EX(f"s_mul_i32 s{sA}, s{sCB}, 640")
        EX(f"v_lshlrev_b32 v198, 3, v{vT}")
        self.t_sk = [EX.vm(f"buffer_load_dwordx2 v[{200+2*tau}:{201+2*tau}], v198, {srd(S_M)}, s{sA} offen offset:{128*tau}") for tau in range(5)]
        self.pp_load(EX)
        if self.o("ssmpos", 8) == "ex":
            EX.extend(self.ssm_touch().flat())
        self.extras = EX
        self.kvx_items()
        if self.o("exstage", 2) == -1:
            S.extend(EX)
        S(f"v_lshlrev_b32 v{vL8}, 3, v{vLANE}")
        S(f"v_add_u32 v{vL8}, 2048, v{vL8}")
        S(f"v_lshrrev_b32 v180, 2, v{vLANE}")
        S(f"v_mul_u32_u24 v180, 160, v180")
        S(f"v_and_b32 v181, 3, v{vLANE}")
        S(f"v_lshl_add_u32 v{vTR}, v181, 3, v180")
        S(f"v_add_u32 v{vTR+1}, 0x10000, v{vTR}")
        S(f"v_add_u32 v{vTR+2}, 0x20000, v{vTR}")
        S(f"v_lshrrev_b32 v180, 2, v{vT}")
        S(f"v_lshlrev_b32 v180, 10, v180")
        S(f"v_and_b32 v181, 3, v{vT}")
        S(f"v_lshl_add_u32 v180, v181, 8, v180")
        S(f"v_add_u32 v180, s{sY}, v180")
        S(f"v_xor_b32 v181, v{vT}, v{vQ}")
        S(f"v_lshl_add_u32 v164, v181, 4, v180")
        for e in range(1, 4):
            S(f"v_xor_b32 v{164+e}, {64*e}, v164")
        C1 = -2.0 * 1.4426950408889634 * 0.7978845608028654
        S(f"s_mov_b32 s{sGC}, {f2u(C1*0.044715):#x}")
        S(f"s_mov_b32 s{sGC+1}, {f2u(C1):#x}")
        S(f"s_mov_b32 s{sNL2E}, {f2u(-1.4426950408889634):#x}")
        S(f"s_mov_b32 s{sINV}, {f2u(1.0/640):#x}")
        S(f"s_mov_b32 s{sEPS}, {f2u(1e-5):#x}")
        S(f"s_mov_b32 s{sMASK}, 0xffff0000")
        S(f"s_mov_b32 s{sONES}, 0x3f803f80")
        S(f"v_mov_b32 v{vONE}, 1")
        S(f"v_mov_b32 v{vZERO}, 0")
        for r in range(4):
            S(f"v_mov_b32 v{176+r}, s{sONES}")
        for r in range(8):
            S(f"v_mov_b32 v{180+r}, 0")
        for r in range(20):
            S(f"v_mov_b32 v{140+r}, 0")
        self.mksrd(S, S_OUT, P_OUT, 2621440)
        self.put(S, self.xitems[1] + self.w1items[1])
        A1, A2 = 188, 189
        S(f"s_mul_i32 s{sA}, s{sW}, {CONV_W}")
        S(f"v_and_b32 v{A1}, 1, v{vT}")
        S(f"v_cmp_eq_u32 vcc, 1, v{A1}")
        S(f"v_lshlrev_b32 v{vH}, 2, v{vT}")
        S(f"v_lshl_add_u32 v{vH}, v{vQ}, 4, v{vH}")
        S(f"v_mov_b32 v{A1}, {C_H2}")
        S(f"v_mov_b32 v{A2}, {C_H0 + 4}")
        S(f"v_cndmask_b32 v{A1}, v{A1}, v{A2}, vcc")
        S(f"v_add3_u32 v{vH}, v{vH}, v{A1}, s{sA}")
        S(f"v_mov_b32 v{A1}, {C_KVB + 448}")
        S(f"v_mov_b32 v{A2}, {C_KVA + 448}")
        S(f"v_cndmask_b32 v{A1}, v{A1}, v{A2}, vcc")
        S(f"v_lshrrev_b32 v{A2}, 1, v{vT}")
        S(f"v_lshlrev_b32 v{A2}, 6, v{A2}")
        S(f"v_sub_u32 v{A1}, v{A1}, v{A2}")
        S(f"v_lshlrev_b32 v{A2}, 4, v{vQ}")
        S(f"v_add3_u32 v{vKV}, v{A1}, v{A2}, s{sA}")
        if self.o("exstage", 2) == -2:
            S.extend(EX)
        skip = self.label("noinit2")
        S(f"s_cmp_ge_u32 s{sG}, {NINIT}")
        S(f"s_cbranch_scc1 {skip}")
        S.optbeg()
        S.wait(self.t_init)
        S("s_mov_b64 exec, 1")
        S.vm(f"buffer_atomic_add v{vONE}, v{vZERO}, {srd(S_DBG)}, 0 offen sc1")
        S("s_mov_b64 exec, -1")
        S.optend()
        S(f"{skip}:")

    def w1_slot_base(self, slot):
        return L_W1 + 5120 * slot

    def x_group(self, g):
        T = Stream()
        self.mod5(T, sS2, sR5, g, sS3)
        T(f"s_lshl_b32 s{sS2}, s{sS2}, 8")
        items = [self.dma_item(160 + i, S_X, f"s{sS2}", sY, 4096 * (g % 3) + 1024 * i) for i in range(4)]
        items[0].pre.ops = T.ops + items[0].pre.ops
        self.t_x[g] = [it.tok for it in items]
        return items

    def w1_stage(self, st):
        T = Stream()
        self.mod5(T, sS0, sR5, st, sS1)
        T(f"s_lshl_b32 s{sS0}, s{sS0}, 2")
        T(f"s_add_u32 s{sS0}, s{sS0}, s{sW}")
        T(f"s_mul_i32 s{sS0}, s{sS0}, 40960")
        T(f"s_add_u32 s{sS0}, s{sS0}, s{sCB160}")
        T(f"s_mul_i32 s{sS1}, s{sW}, 5120")
        items = [self.dma_item(168 + j, S_W, f"s{sS0}", sS1, self.w1_slot_base(4 * st) + 1024 * j) for j in range(5)]
        items[0].pre.ops = T.ops + items[0].pre.ops
        self.t_w1[st] = [it.tok for it in items]
        return items

    def gemm1(self):
        S = self.S
        XF, ACC, CS = 40, 120, 140
        w2q = self.w2_items()
        WB = lambda s, nu: 20 * (s & 1) + 4 * nu

        def reads(s):
            out = []
            b = self.w1_slot_base(s)
            for nu in range(5):
                for jh in range(2):
                    T = Stream()
                    t = T.ds(f"ds_read_b64_tr_b16 a[{WB(s,nu)+2*jh}:{WB(s,nu)+2*jh+1}], {self.ldsaddr(vTR, b + 2560*jh + 32*nu)}")
                    out.append((T.ops, t, nu))
            return out

        rd = {}
        side = []
        nw2 = self.o("nw2", [0, 0, 0, 0, 0])
        for st in range(5):
            S.wait(self.t_x[st])
            for e in range(4):
                s = 4 * st + e
                rd[s] = S.ds(f"ds_read_b128 v[{XF+4*s}:{XF+4*s+3}], v{164+e} offset:{4096*(st % 3)}")
            S.wait(self.t_w1[st])
            S.barrier()
            if st == 0:
                self.stamp(S, "bar0")
            if st == 4:
                self.stamp(S, "bar4")
            cur = reads(4 * st)
            for ops, t, nu in cur:
                S.extend(ops)
            if st + 2 < 5:
                side += self.xitems[st + 2] + self.w1items[st + 2]
            if st == 4:
                side += self.kv_items
            side += w2q[:nw2[st]]
            w2q = w2q[nw2[st]:]
            X = Stream()
            self.stats1(X, st, rd, XF)
            X, side = sprinkle(X, side, 8, 70)
            S.extend(X)
            for s in range(4 * st, 4 * st + 4):
                nxt = reads(s + 1) if (s + 1) % 4 else []
                for nu in range(5):
                    if nu in (0, 2, 4):
                        S.wait([t for o, t, n in cur if n <= nu + 1])
                    it = None
                    if nu in (1, 3) and side:
                        it = side.pop(0)
                        S.extend(it.pre)
                    c = "0" if s == 0 else f"v[{ACC+4*nu}:{ACC+4*nu+3}]"
                    S(f"v_mfma_f32_16x16x32_bf16 v[{ACC+4*nu}:{ACC+4*nu+3}], a[{WB(s,nu)}:{WB(s,nu)+3}], v[{XF+4*s}:{XF+4*s+3}], {c}")
                    if it:
                        S.extend(it.post)
                    for ops, t, n in nxt[2 * nu:2 * nu + 2]:
                        S.extend(ops)
                lab = self.label("cs")
                S(f"s_cmp_lg_u32 s{sW}, {s % 4}")
                S(f"s_cbranch_scc1 {lab}")
                for nu in range(5):
                    S(f"v_mfma_f32_16x16x32_bf16 v[{CS+4*nu}:{CS+4*nu+3}], a[{WB(s,nu)}:{WB(s,nu)+3}], v[176:179], v[{CS+4*nu}:{CS+4*nu+3}]")
                S(f"{lab}:")
                cur = nxt
            self.put(S, side)
            side = []
            if self.o("exstage", 2) == st:
                S.extend(self.extras)
            if self.o("l2t", 0) and st == self.o("w2tst", 3):
                self.mksrd(S, S_M, P_W2, 819200)
                if self.mapping == "4x8":
                    S(f"s_mul_i32 s{sA}, s{sR4}, {50*128}")
                    S("s_mov_b32 exec_hi, 0x3ffff")
                    S.vm(f"buffer_load_dword v197, v196, {srd(S_M)}, s{sA} offen")
                else:
                    S(f"v_mul_u32_u24 v198, 13108, v{vLANE}")
                    S(f"v_lshrrev_b32 v198, 16, v198")
                    S(f"v_mul_u32_u24 v198, 640, v198")
                    S(f"v_add_u32 v198, v198, v196")
                    S(f"s_mul_i32 s{sA}, s{sR4}, {5*1280}")
                    S(f"s_lshr_b32 s{sB}, s{sCB}, 2")
                    S(f"s_mul_i32 s{sB}, s{sB}, 640")
                    S(f"s_add_u32 s{sA}, s{sA}, s{sB}")
                    S("s_mov_b64 exec, 0x1ffffff")
                    S.vm(f"buffer_load_dword v197, v198, {srd(S_M)}, s{sA} offen")
                S("s_mov_b64 exec, -1")
        S(f"v_lshlrev_b32 v189, 4, v{vQ}")
        S(f"v_add_u32 v188, s{sY}, v189")
        S(f"v_add_u32 v189, {L_XR}, v189")
        S("s_mov_b32 exec_lo, 0x00010001")
        S("s_mov_b32 exec_hi, 0x00010001")
        for nu in range(5):
            S.ds(f"ds_write_b128 v188, v[{CS+4*nu}:{CS+4*nu+3}] offset:{O_CS1 + 64*nu}")
        S("s_mov_b64 exec, -1")
        self.pp_read(S)
        S.wait_all(vm=False, ds=True)
        S.barrier()
        self.stamp(S, "g1mfma")
        rdc = {}
        for w in range(4):
            for nu in range(5):
                rdc[w, nu] = S.ds(f"ds_read_b128 v[{XF+20*w+4*nu}:{XF+20*w+4*nu+3}], v189 offset:{O_CS1 + XR_W*w + 64*nu}")
        self.stats1_fin(S)
        KA, KB = 190, 186
        E = Stream()
        HP = 100
        E(f"s_lshl_b32 s{sE}, s{sRB}, 2")
        E(f"s_add_u32 s{sE}, s{sE}, s{sW}")
        E(f"s_lshl_b32 s{sU}, s{sE}, 7")
        E(f"s_mul_i32 s{sE}, s{sE}, 20480")
        E(f"s_mul_i32 s{sF}, s{sCB}, 2560")
        E(f"s_add_u32 s{sF}, s{sF}, s{sE}")
        E(f"s_add_u32 s{sC}, s{sF}, {WS_H}")
        self.t_rdy = self.poll_load(E, 199, vZERO, S_DBG)
        E.wait([rdc[w, nu] for w in range(2) for nu in range(5)])
        for p in range(10):
            E(f"v_pk_add_f32 v[{XF+2*p}:{XF+2*p+1}], v[{XF+2*p}:{XF+2*p+1}], v[{XF+20+2*p}:{XF+20+2*p+1}]")
        E.wait(list(rdc.values()))
        for p in range(10):
            E(f"v_pk_add_f32 v[{XF+40+2*p}:{XF+40+2*p+1}], v[{XF+40+2*p}:{XF+40+2*p+1}], v[{XF+60+2*p}:{XF+60+2*p+1}]")
        for p in range(10):
            E(f"v_pk_add_f32 v[{XF+2*p}:{XF+2*p+1}], v[{XF+2*p}:{XF+2*p+1}], v[{XF+40+2*p}:{XF+40+2*p+1}]")
        for p in range(10):
            E(f"v_pk_fma_f32 v[{ACC+2*p}:{ACC+2*p+1}], v[{XF+2*p}:{XF+2*p+1}], v[{KB}:{KB+1}], v[{ACC+2*p}:{ACC+2*p+1}] op_sel_hi:[1,0,1]")
        st = []
        self.gelu_pairs(E, [(ACC + 2 * p, HP + p) for p in range(4)], 80, KA, KB)
        st.append(E.vm(f"buffer_store_dwordx4 v[{HP}:{HP+3}], v{vL16}, {srd(S_WS)}, s{sC} offen sc1"))
        self.gelu_pairs(E, [(ACC + 2 * p, HP + p) for p in range(4, 8)], 80, KA, KB)
        st.append(E.vm(f"buffer_store_dwordx4 v[{HP+4}:{HP+7}], v{vL16}, {srd(S_WS)}, s{sC} offen offset:1024 sc1"))
        self.gelu_pairs(E, [(ACC + 2 * p, HP + p) for p in range(8, 10)], 80, KA, KB)
        st.append(E.vm(f"buffer_store_dwordx2 v[{HP+8}:{HP+9}], v{vL8}, {srd(S_WS)}, s{sC} offen sc1"))
        self.t_hst = st + [self.t_st1]
        E, self.side = sprinkle(E, w2q, self.o("s_e1", 10000), self.o("p_e1", 125))
        S.extend(E)
        self.stamp(S, "g1epi")

    def stats1(self, S, g, rd, XF):
        for e in range(4):
            s = 4 * g + e
            if e % 2 == 0:
                S.wait(rd[s], rd[s + 1])
            for r in range(4):
                S(f"v_dot2c_f32_bf16 v{180+r}, s{sONES}, v{XF+4*s+r}")
            for r in range(4):
                S(f"v_dot2c_f32_bf16 v{184+r}, v{XF+4*s+r}, v{XF+4*s+r}")

    def stats1_fin(self, S):
        S("v_add_f32 v180, v180, v181\n v_add_f32 v182, v182, v183\n v_add_f32 v184, v184, v185\n v_add_f32 v186, v186, v187")
        S("v_add_f32 v180, v180, v182\n v_add_f32 v181, v184, v186")
        self.qreduce2(S, 180, 181, 182)
        S(f"v_mul_f32 v184, s{sINV}, v180")
        S(f"v_mul_f32 v181, s{sINV}, v181")
        S(f"v_fma_f32 v181, -v184, v184, v181")
        S(f"v_max_f32 v181, 0, v181")
        S(f"v_add_f32 v182, s{sEPS}, v181")
        S(f"v_rsq_f32 v185, v182")
        S(f"s_lshl_b32 s{sA}, s{sRB}, 3")
        S(f"v_mul_f32 v181, v181, v185")
        S(f"v_mul_f32 v182, v182, v185")
        S(f"v_mul_f32 v181, v181, v185")
        S(f"v_add_f32 v181, s{sEPS}, v181")
        S(f"v_rsq_f32 v183, v181")
        S(f"s_add_u32 s{sA}, s{sA}, s{sCB}")
        S(f"v_mul_f32 v181, v181, v183")
        S(f"v_mul_f32 v183, v185, v183")
        S(f"v_mul_f32 v187, v181, v182")
        S(f"v_sub_f32 v186, 0, v184")
        self.gelu_consts(S, 183, 190)
        S(f"s_lshl_b32 s{sA}, s{sA}, 9")
        S(f"s_lshl_b32 s{sB}, s{sW}, 7")
        S(f"s_add_u32 s{sH}, s{sA}, s{sB}")
        S(f"s_add_u32 s{sA}, s{sH}, {WS_ST1 - 2048}")
        S("s_mov_b64 exec, 0xffff")
        self.t_st1 = S.vm(f"buffer_store_dwordx2 v[184:185], v{vL8}, {srd(S_WS)}, s{sA} offen sc1")
        S("s_mov_b64 exec, -1")

    def kvx_items(self):
        self.kv_items, self.xt_items = [], []
        self.t_k, self.t_v, self.t_xt = [], [], []
        T = Stream()
        T(f"s_sub_u32 s{sS5}, s{sT0}, 4")
        T(f"s_mul_i32 s{sS5}, s{sS5}, 1280")
        for j in range(4):
            T(f"v_add_u32 v{160+j}, s{sS5}, v{vNAT+j}")
        for j in range(4):
            it = self.dma_item(160 + j, S_K, f"s{sCB160}", sY, 1024 * j, mask="s_mov_b64 exec, 0xff" if j == 3 else None)
            if j == 0:
                it.pre.ops = T.ops + it.pre.ops
            self.t_k.append(it.tok)
            self.kv_items.append(it)
        for sr, base, lst, dst in ((S_V, 3200, self.t_v, self.kv_items), (S_X, 5760, self.t_xt, self.xt_items)):
            for j in range(3):
                it = self.dma_item(vNAT + j, sr, f"s{sS5}", sY, base + 1024 * j, mask="s_mov_b32 exec_hi, 0" if j == 2 else None,
                                   pre=f"s_mul_i32 s{sS5}, s{sT0}, 1280\n s_add_u32 s{sS5}, s{sS5}, s{sCB160}" if j == 0 else None)
                lst.append(it.tok)
                dst.append(it)

    def ssm_touch(self):
        it = Item()
        if self.o("touch", 1) and self.o("ssmdel", 1):
            T = it.post
            lab = self.label("nossm")
            T(f"s_cmp_lt_u32 s{sCI}, 20")
            T(f"s_cbranch_scc1 {lab}")
            T.optbeg()
            self.mksrd(T, S_M, P_SSMK, 2621440)
            T(f"s_sub_u32 s43, s{sCI}, 20")
            T(f"s_lshl_b32 s43, s43, 3")
            T(f"s_add_u32 s43, s43, s{sCB}")
            T(f"s_lshl_b32 s43, s43, 2")
            T(f"s_add_u32 s43, s43, s{sW}")
            T(f"s_mul_i32 s43, s43, {54*128}")
            T(f"v_lshlrev_b32 v252, 7, v{vLANE}")
            T("s_mov_b32 exec_hi, 0x3fffff")
            T.vm(f"buffer_load_dword v253, v252, {srd(S_M)}, s43 offen")
            T("s_mov_b64 exec, -1")
            T.optend()
            T(f"{lab}:")
        elif self.o("touch", 1):
            T = it.pre
            self.mksrd(T, S_M, P_SSMK, 2621440)
            T(f"s_min_u32 s43, s{sCI}, 19")
            T(f"s_lshl_b32 s43, s43, 2")
            T(f"s_add_u32 s43, s43, s{sW}")
            T(f"s_mul_i32 s{sA}, s{sCB}, 80")
            T(f"s_add_u32 s43, s43, s{sA}")
            T(f"s_lshl_b32 s43, s43, 12")
            T(f"v_lshlrev_b32 v252, 7, v{vLANE}")
            it.post("s_mov_b32 exec_hi, 0")
            it.post.vm(f"buffer_load_dword v253, v252, {srd(S_M)}, s43 offen")
            it.post("s_mov_b64 exec, -1")
        return it

    def pp_guard(self, S, fn):
        lab = self.label("nopp")
        S(f"s_cmp_ge_u32 s40, 560")
        S(f"s_cbranch_scc1 {lab}")
        S.optbeg()
        fn(S)
        S.optend()
        S(f"{lab}:")

    def pp_load(self, S):
        S(f"s_lshl_b32 s{sA}, s{sRB}, 3")
        S(f"s_add_u32 s{sA}, s{sA}, s{sCB}")
        S(f"s_lshl_b32 s40, s{sA}, 1")
        S(f"s_add_u32 s40, s40, s{sW}")
        S(f"s_add_u32 s{sA}, s{sA}, {512 - 208}")
        S(f"s_cmp_ge_u32 s{sRB}, 26")
        S(f"s_cselect_b32 s{sA}, s{sA}, 560")
        S(f"s_cmp_eq_u32 s{sW}, 2")
        S(f"s_cselect_b32 s40, s{sA}, s40")
        S(f"s_cmp_eq_u32 s{sW}, 3")
        S(f"s_cselect_b32 s40, 560, s40")

        def f(T):
            self.mksrd(T, S_M, P_W4, 2211840)
            T(f"s_mul_i32 s{sA}, s40, 6554")
            T(f"s_lshr_b32 s{sA}, s{sA}, 16")
            T(f"s_mul_i32 s{sB}, s{sA}, 10")
            T(f"s_sub_u32 s41, s40, s{sB}")
            T(f"s_mul_i32 s{sB}, s{sA}, 4682")
            T(f"s_lshr_b32 s36, s{sB}, 16")
            T(f"s_mul_i32 s{sB}, s36, 14")
            T(f"s_sub_u32 s37, s{sA}, s{sB}")
            T(f"s_mul_i32 s{sA}, s37, 21846")
            T(f"s_lshr_b32 s{sA}, s{sA}, 16")
            T(f"s_lshl_b32 s{sA}, s{sA}, 4")
            T(f"s_lshl_b32 s{sB}, s37, 5")
            T(f"s_add_u32 s{sA}, s{sA}, s{sB}")
            T(f"s_add_u32 s{sB}, s{sA}, 16")
            T(f"s_cmp_eq_u32 s37, 12")
            T(f"s_cselect_b32 s{sA}, 96, s{sA}")
            T(f"s_cselect_b32 s{sB}, 208, s{sB}")
            T(f"s_cmp_eq_u32 s37, 13")
            T(f"s_cselect_b32 s{sA}, 320, s{sA}")
            T(f"s_cselect_b32 s{sB}, 320, s{sB}")
            T(f"s_mul_i32 s{sC}, s36, 432")
            T(f"s_add_u32 s{sA}, s{sA}, s{sC}")
            T(f"s_add_u32 s{sB}, s{sB}, s{sC}")
            T(f"s_mul_i32 s{sA}, s{sA}, 1280")
            T(f"s_mul_i32 s{sB}, s{sB}, 1280")
            T(f"s_lshl_b32 s{sC}, s41, 7")
            T(f"s_add_u32 s{sA}, s{sA}, s{sC}")
            T(f"s_add_u32 s{sB}, s{sB}, s{sC}")
            T(f"v_lshrrev_b32 v210, 3, v{vLANE}")
            T(f"v_mul_u32_u24 v210, 1280, v210")
            T(f"v_and_b32 v211, 7, v{vLANE}")
            T(f"v_lshl_add_u32 v210, v211, 4, v210")
            T(f"s_lshl_b32 s{sC}, s{sW}, 12")
            T(f"s_add_u32 s{sC}, s{sC}, {L_KVT}")
            self.t_pp = []
            for i in range(4):
                d = self.dma_item(210, S_M, f"s{sA + (i >> 1)}", sC, 1024 * i,
                                  pre=f"s_add_u32 s{sA + (i >> 1)}, s{sA + (i >> 1)}, {8*1280}" if i & 1 else None)
                self.t_pp.append(d.tok)
                T.extend(d.flat())
            T(f"v_lshrrev_b32 v210, 2, v{vLANE}")
            T(f"v_lshlrev_b32 v210, 7, v210")
            T(f"v_and_b32 v211, 3, v{vLANE}")
            T(f"v_lshl_add_u32 v210, v211, 3, v210")
            T(f"v_add_u32 v210, s{sC}, v210")
        self.pp_guard(S, f)

    def pp_read(self, S):
        def f(T):
            T.wait(self.t_pp)
            for i in range(4):
                for jh in range(2):
                    r = 212 + 4 * i + 2 * jh
                    T.ds(f"ds_read_b64_tr_b16 v[{r}:{r+1}], v210 offset:{2048*jh + 32*i}")
        self.pp_guard(S, f)

    def pp_store(self, S):
        self.t_ppst = []

        def f(T):
            T(f"s_mul_i32 s38, s36, 71680")
            T(f"s_mul_i32 s{sA}, s37, 5120")
            T(f"s_add_u32 s38, s38, s{sA}")
            T(f"s_add_u32 s38, s38, {WS_W4P}")
            for i in range(4):
                T(f"s_lshl_b32 s{sA}, s41, 2")
                T(f"s_add_u32 s{sA}, s{sA}, {i}")
                T(f"s_mul_i32 s{sB}, s{sA}, 13108")
                T(f"s_lshr_b32 s{sB}, s{sB}, 16")
                T(f"s_lshl_b32 s{sA}, s{sA}, 10")
                T(f"s_mul_i32 s{sB}, s{sB}, {4*71680 - 5*1024}")
                T(f"s_add_u32 s{sA}, s{sA}, s{sB}")
                T(f"s_add_u32 s{sA}, s{sA}, s38")
                r = 212 + 4 * i
                self.t_ppst.append(T.vm(f"buffer_store_dwordx4 v[{r}:{r+3}], v{vL16}, {srd(S_WS)}, s{sA} offen sc1"))
        self.pp_guard(S, f)

    def pp_flag(self, S):
        def f(T):
            for i in (0, 3):
                T(f"s_lshl_b32 s{sA}, s41, 2")
                T(f"s_add_u32 s{sA}, s{sA}, {i}")
                T(f"s_mul_i32 s{sA}, s{sA}, 13108")
                T(f"s_lshr_b32 s{sA}, s{sA}, 16")
                T(f"s_mul_i32 s{sB}, s{sA}, 5")
                T(f"s_lshr_b32 s{sB}, s{sB}, 2")
                T(f"s_sub_u32 s{sB}, s41, s{sB}")
                T(f"s_lshl_b32 s{sC}, s37, 1")
                T(f"s_add_u32 s{sB}, s{sB}, s{sC}")
                T(f"s_lshl_b32 s{sB}, s{sB}, 2")
                T(f"s_lshl_b32 s{sA}, s{sA}, 2")
                T(f"s_add_u32 s{sA}, s{sA}, s36")
                T(f"s_lshl_b32 s{sA}, s{sA}, 7")
                T(f"s_add_u32 s{sA}, s{sA}, s{sB}")
                T(f"s_add_u32 s{sA}, s{sA}, {FL_P*128}")
                self.flag_store(T, sA)
        self.pp_guard(S, f)

    def w2_items(self):
        G = []
        self.t_w2 = []
        for i in range(5):
            T = Stream()
            if i == 0:
                self.mksrd(T, S_W, P_W2, 819200)
                T(f"s_mul_i32 s{sS0}, s{sW}, 40960")
                T(f"s_add_u32 s{sS0}, s{sS0}, s{sCB160}")
                T(f"s_mul_i32 s{sS1}, s{sW}, 5120")
            else:
                T(f"s_add_u32 s{sS0}, s{sS0}, {4*40960}")
            for j in range(5):
                it = self.dma_item(vNAT + j, S_W, f"s{sS0}", sS1, L_W2 + 20480 * i + 1024 * j)
                if j == 0:
                    it.pre.ops = T.ops + it.pre.ops
                self.t_w2.append(it.tok)
                G.append(it)
        return G

    def window1(self):
        S = self.S
        D = Stream()
        D(f"s_add_u32 s{sC}, s{sW}, 1")
        D(f"s_min_u32 s{sC}, s{sC}, 3")
        D(f"s_sub_u32 s{sC}, s{sC}, s{sW}")
        D(f"s_lshl_b32 s{sC}, s{sC}, 7")
        D(f"v_lshlrev_b32 v{vFA}, 2, v{vLANE}")
        D(f"v_mov_b32 v163, s{sC}")
        D(f"v_cmp_lt_u32 vcc, 7, v{vLANE}")
        D(f"v_cndmask_b32 v{vFA}, v{vFA}, v163, vcc")
        for j in range(7):
            self.divpat(D, 166 + j, j, 14, 3456, 180)
        D(f"v_add_u32 v160, s{sY}, v{vTR}")
        D(f"v_mul_u32_u24 v161, 160, v{vT}")
        D(f"v_lshl_add_u32 v161, v{vQ}, 3, v161")
        D(f"v_add_u32 v161, s{sY}, v161")
        self.kv_coeffs(D)
        self.kv_reads(D)
        D.wait_all(vm=False, ds=True)

        def sig(T):
            self.signal_f1(T)
            self.stamp(T, "f1sent")
        self.kv_compute(D, self.o("f1tau", 0), sig)
        q = self.xt_items + self.side
        D, q = sprinkle(D, q, 0, self.o("p_w1", 60))
        S.extend(D)
        NL = min(self.o("w2late", 4), len(q))
        self.put(S, q[:len(q)-NL])
        t_poll = self.poll_load(S, vFD, vFA, S_WS, f"s{sU}")
        self.put(S, q[len(q)-NL:])
        self.side = []
        self.poll_check(S, t_poll, vFD, vFA, S_WS, f"s{sU}")
        self.stamp(S, "f1seen")

    def kv_coeffs(self, D):
        D.wait(self.t_sk)
        D(f"v_mov_b32 v183, 0xffff")
        for tau in range(5):
            s01, s23, c = 200 + 2 * tau, 201 + 2 * tau, 228 + 5 * tau
            D(f"v_alignbit_b32 v{c}, v{s01}, v{s01}, 16")
            D(f"v_alignbit_b32 v{c+1}, v{s23}, v{s23}, 16")
            D(f"v_and_b32 v{c+2}, v183, v{s01}")
            D(f"v_bfi_b32 v{c+3}, v183, v{s23}, v{s01}")
            D(f"v_and_b32 v{c+4}, s{sMASK}, v{s23}")
        D(f"v_mul_u32_u24 v162, 144, v{vT}")
        D(f"v_lshlrev_b32 v163, 3, v{vQ}")
        D(f"v_sub_u32 v162, v162, v163")
        D(f"s_lshl_b32 s{sC}, s{sW}, 5")
        D(f"s_sub_u32 s{sC}, {L_KVT + 120}, s{sC}")
        D(f"v_add_u32 v162, s{sC}, v162")
        D(f"v_lshrrev_b32 v157, 3, v{vLANE}")
        D(f"v_and_b32 v158, 7, v{vLANE}")
        D(f"v_lshlrev_b32 v158, 4, v158")
        D(f"v_mul_u32_u24 v156, 144, v157")
        D(f"v_add_u32 v156, v156, v158")
        D(f"s_mul_i32 s{sC}, s{sW}, {20*144}")
        D(f"s_add_u32 s{sC}, s{sC}, {L_KVT}")
        D(f"v_add_u32 v156, s{sC}, v156")
        D(f"v_lshl_add_u32 v157, v157, 12, v158")
        D(f"s_mul_i32 s{sC}, s{sCB}, 80")
        D(f"s_mul_i32 s{sD}, s{sW}, 20")
        D(f"s_add_u32 s{sC}, s{sC}, s{sD}")
        D(f"s_lshl_b32 s{sC}, s{sC}, 12")
        D(f"s_lshl_b32 s{sD}, s{sRB}, 7")
        D(f"s_sub_u32 s{sC}, s{sC}, s{sD}")
        D(f"s_add_u32 s39, s{sC}, {WS_KVR + 3968}")

    def kv_reads(self, E):
        E.wait(self.t_k, self.t_v)
        for tau in range(5):
            b = 60 + 6 * tau
            E.ds(f"ds_read_b64_tr_b16 v[{b}:{b+1}], v160 offset:{32*tau}")
            E.ds(f"ds_read_b64_tr_b16 v[{b+2}:{b+3}], v160 offset:{640 + 32*tau}")
            E.ds(f"ds_read_b64_tr_b16 v[{b+4}:{b+5}], v160 offset:{3200 + 32*tau}")

    def kv_compute(self, E, mid_tau, mid_fn):
        for tau in range(5):
            b, c = 60 + 6 * tau, 228 + 5 * tau
            O, V, P = 40 + 4 * (tau & 1), 48 + 4 * (tau & 1), 90 + 2 * tau
            if tau == mid_tau:
                mid_fn(E)
            E(f"v_dot2_f32_bf16 v{O}, v{b+2}, v{c+2}, 0")
            E(f"v_dot2_f32_bf16 v{O+1}, v{b+2}, v{c}, 0")
            E(f"v_dot2_f32_bf16 v{O+2}, v{b+3}, v{c+2}, 0")
            E(f"v_dot2_f32_bf16 v{O+3}, v{b+3}, v{c}, 0")
            E(f"v_lshlrev_b32 v{V}, 16, v{b+4}")
            E(f"v_and_b32 v{V+1}, s{sMASK}, v{b+4}")
            E(f"v_dot2_f32_bf16 v{O}, v{b+1}, v{c+3}, v{O}")
            E(f"v_dot2_f32_bf16 v{O+1}, v{b+1}, v{c+1}, v{O+1}")
            E(f"v_dot2_f32_bf16 v{O+2}, v{b+2}, v{c+3}, v{O+2}")
            E(f"v_dot2_f32_bf16 v{O+3}, v{b+2}, v{c+1}, v{O+3}")
            E(f"v_dot2_f32_bf16 v{O}, v{b}, v{c+4}, v{O}")
            E(f"v_dot2_f32_bf16 v{O+2}, v{b+1}, v{c+4}, v{O+2}")
            E(f"v_lshlrev_b32 v{V+2}, 16, v{b+5}")
            E(f"v_and_b32 v{V+3}, s{sMASK}, v{b+5}")
            E(f"s_nop 0")
            E(f"v_pk_mul_f32 v[{O}:{O+1}], v[{O}:{O+1}], v[{V}:{V+1}]")
            E(f"v_pk_mul_f32 v[{O+2}:{O+3}], v[{O+2}:{O+3}], v[{V+2}:{V+3}]")
            E(f"v_cvt_pk_bf16_f32 v{P+1}, v{O+1}, v{O}")
            E(f"v_cvt_pk_bf16_f32 v{P}, v{O+3}, v{O+2}")
            E.ds(f"ds_write_b64 v162, v[{P}:{P+1}] offset:{16*144*tau}")
        if mid_tau >= 5:
            mid_fn(E)

    def signal_f1(self, E):
        E.wait(self.t_hst)
        self.poll_check(E, self.t_rdy, 199, vZERO, S_DBG, val=NINIT, cmp="gt")
        E(f"s_lshl_b32 s{sC}, s{sCB}, 2")
        E(f"s_add_u32 s{sC}, s{sC}, s{sU}")
        self.flag_store(E, sC)
        self.self_touch(E, WS_H)

    def self_touch(self, E, base):
        if self.o("selft", 0):
            E(f"s_add_u32 s{sC}, s{sF}, {base}")
            E("s_mov_b64 exec, 0xfffff")
            E.vm(f"buffer_load_dword v197, v196, {srd(S_WS)}, s{sC} offen sc1")
            E("s_mov_b64 exec, -1")

    @staticmethod
    def ksteps():
        out = []
        for P in range(4):
            for e, off in ((0, 0), (0, 1024), (1, 2560), (1, 3584)):
                f = 0 if off in (0, 2560) else 1
                r0 = 80 * (2 * P + e) + 32 * f
                out.append(("full", P, off, (r0, r0 + 16)))
            out.append(("half", P, None, (160 * P + 64, 160 * P + 144)))
        return out

    def a_items(self, reg, soffreg, step, pre=None):
        kind, P, off, rows = step
        if kind == "full":
            return [self.vm_item(f"buffer_load_dwordx4 v[{reg}:{reg+3}], v{vL16}, {srd(S_WS)}, s{soffreg} offen offset:{off} {self.ld}", pre=pre)]
        it = self.vm_item(f"buffer_load_dwordx2 v[{reg}:{reg+1}], v{vL8}, {srd(S_WS)}, s{soffreg} offen {self.ld}", pre=pre)
        it.tok2 = it.post.vm(f"buffer_load_dwordx2 v[{reg+2}:{reg+3}], v{vL8}, {srd(S_WS)}, s{soffreg} offen offset:2560 {self.ld}")
        it.tok = it.tok2
        return [it]

    def group_offsets(self, S, base_sreg, const):
        for g in range(4):
            S(f"s_add_u32 s{sP0+g}, s{base_sreg}, {const + 5120*g}")

    def w3_items(self, S):
        self.mksrd(S, S_W, P_W3, 2211840)
        if self.o("g3n", 4) == 8 and self.mapping == "8x4":
            S(f"s_bfe_u32 s{sA}, s{sRB}, 0x10003")
            S(f"s_lshl_b32 s{sA}, s{sA}, 3")
            S(f"s_add_u32 s{sJJ}, s{sA}, s{sCB}")
            S(f"s_lshr_b32 s{sPP}, s{sRB}, 4")
            S(f"s_lshl_b32 s{sPP}, s{sPP}, 3")
            S(f"s_and_b32 s{sA}, s{sRB}, 7")
            S(f"s_add_u32 s{sPP}, s{sPP}, s{sA}")
        elif self.o("g3n", 4) == 8:
            S(f"s_bfe_u32 s{sA}, s{sRB}, 0x20002")
            S(f"s_lshl_b32 s{sA}, s{sA}, 2")
            S(f"s_and_b32 s{sB}, s{sCB}, 3")
            S(f"s_add_u32 s{sJJ}, s{sA}, s{sB}")
            S(f"s_lshr_b32 s{sPP}, s{sRB}, 4")
            S(f"s_lshl_b32 s{sPP}, s{sPP}, 2")
            S(f"s_and_b32 s{sA}, s{sRB}, 3")
            S(f"s_add_u32 s{sPP}, s{sPP}, s{sA}")
            S(f"s_lshl_b32 s{sPP}, s{sPP}, 1")
            S(f"s_lshr_b32 s{sA}, s{sCB}, 2")
            S(f"s_add_u32 s{sPP}, s{sPP}, s{sA}")
        elif self.mapping == "4x8" and self.o("g3n", 4) == 4:
            S(f"s_bfe_u32 s{sA}, s{sRB}, 0x10002")
            S(f"s_lshl_b32 s{sA}, s{sA}, 3")
            S(f"s_add_u32 s{sJJ}, s{sA}, s{sCB}")
            S(f"s_lshr_b32 s{sPP}, s{sRB}, 3")
            S(f"s_lshl_b32 s{sPP}, s{sPP}, 2")
            S(f"s_and_b32 s{sA}, s{sRB}, 3")
            S(f"s_add_u32 s{sPP}, s{sPP}, s{sA}")
        else:
            S(f"s_and_b32 s{sA}, s{sRB}, 1")
            S(f"s_lshl_b32 s{sA}, s{sA}, 3")
            S(f"s_add_u32 s{sJJ}, s{sA}, s{sCB}")
            S(f"s_lshr_b32 s{sPP}, s{sRB}, 1")
        S(f"s_lshr_b32 s{sA}, s{sJJ}, 2")
        S(f"s_mul_i32 s{sA}, s{sA}, 27")
        S(f"s_and_b32 s{sB}, s{sJJ}, 3")
        S(f"s_mul_i32 s{sB}, s{sB}, 7")
        S(f"s_add_u32 s{sA}, s{sA}, s{sB}")
        S(f"s_lshl_b32 s{sA}, s{sA}, 5")
        S(f"s_mul_i32 s{sS2}, s{sW}, {32*3456}")
        S(f"s_add_u32 s{sS2}, s{sS2}, s{sA}")
        S(f"s_mul_i32 s{sS3}, s{sW}, 7168")
        w3 = {}
        self.t_w3 = {}
        for i in range(5):
            w3[i] = []
            for j in range(7):
                it = self.dma_item(166 + j, S_W, f"s{sS1}", sS3, L_W3 + 28672 * i + 1024 * j,
                                   pre=f"s_add_u32 s{sS1}, s{sS2}, {4*32*3456*i}" if j == 0 else None)
                self.t_w3.setdefault(i, []).append(it.tok)
                w3[i].append(it)
        return w3

    def gemm2(self):
        S = self.S
        AF, ACC = 40, 120
        steps = self.ksteps()
        NB = 12
        WB = lambda s, nu: 20 * (s % NB) + 4 * nu
        self.group_offsets(S, sE, WS_H)
        loads, ta = [], {}
        for s, st in enumerate(steps):
            its = self.a_items(AF + 4 * s, sP0 + st[1], st)
            ta[s] = its[-1].tok
            loads += its
        N0 = self.o("g2n0", 6)
        self.put(S, loads[:N0])
        S(f"s_lshl_b32 s{sA}, s{sW}, 4")
        S(f"v_add_u32 v164, s{sA}, v{vT}")
        S(f"v_cmp_eq_u32 vcc, 63, v164")
        S(f"v_lshlrev_b32 v164, 3, v164")
        S(f"v_add_u32 v164, 8, v164")
        S(f"v_mov_b32 v165, {1024 + 62*8}")
        S(f"s_lshl_b32 s{sS4}, s{sRB}, 12")
        S(f"s_add_u32 s{sS4}, s{sS4}, {WS_ST1}")
        S(f"v_cndmask_b32 v164, v164, v165, vcc")
        w3 = self.w3_items(S)
        S.wait(self.t_xt)
        for tau in range(5):
            S.ds(f"ds_read_b64 v[{vXT+2*tau}:{vXT+2*tau+1}], v161 offset:{5760 + 32*tau}")
        S.wait(self.t_w2)
        S.wait_all(vm=False, ds=True)
        S.barrier()
        self.stamp(S, "w2bar")
        it = self.vm_item(f"buffer_load_dwordx2 v[{vMR}:{vMR+1}], v164, {srd(S_WS)}, s{sS4} offen sc1")
        t_mr = it.tok
        itp = Item()
        self.pp_store(itp.post)
        rr = [S.ds(f"ds_read_b128 v[{144+4*i}:{147+4*i}], v156 offset:{8*144*i}") for i in range(3)]
        self.t_kvst = []
        kvs = []
        for i in range(3):
            itk = self.vm_item(f"buffer_store_dwordx4 v[{144+4*i}:{147+4*i}], v157, {srd(S_WS)}, s39 offen sc1",
                               pre=f"s_add_u32 s39, s39, {8*4096}" if i else None, mask="s_mov_b32 exec_hi, 0" if i == 2 else None)
            itk.pre.wait(rr[i])
            self.t_kvst.append(itk.tok)
            kvs.append(itk)
        tch = []
        if self.o("l2t", 0):
            for e in range(2):
                t = self.vm_item(f"buffer_load_dword v197, v{198+e}, {srd(S_W)}, s{sS5} offen", mask="s_mov_b32 exec_hi, 0x1fff" if e == 0 else "s_mov_b64 exec, 0x3fffffff")
                if e == 0:
                    t.pre(f"v_mul_u32_u24 v198, 4370, v{vLANE}")
                    t.pre(f"v_lshrrev_b32 v198, 16, v198")
                    t.pre(f"v_mul_u32_u24 v198, {3456 - 15*128}, v198")
                    t.pre(f"v_add_u32 v198, v198, v196")
                    t.pre(f"v_add_u32 v199, {3*3456}, v198")
                    t.pre(f"s_lshr_b32 s{sS5}, s{sJJ}, 3")
                    t.pre(f"s_mul_i32 s{sS5}, s{sS5}, 1664")
                    t.pre(f"s_mul_i32 s{sA}, s{sR4}, {5*3456}")
                    t.pre(f"s_add_u32 s{sS5}, s{sS5}, s{sA}")
                tch.append(t)
        early = w3[4] if self.o("w3early", 0) else []
        queue = loads[N0:] + [it] + tch + kvs + [itp] + early
        rdtok = {}

        def reads(s):
            out = []
            rows = steps[s][3]
            for nu in range(5):
                for jh in range(2):
                    T = Stream()
                    t = T.ds(f"ds_read_b64_tr_b16 a[{WB(s,nu)+2*jh}:{WB(s,nu)+2*jh+1}], {self.ldsaddr(vTR, L_W2 + 160*rows[jh] + 32*nu)}")
                    rdtok.setdefault(s, []).append(t)
                    out.append(T.ops)
            return out

        PRE = self.o("g2pre", 2)
        for s in range(PRE):
            for k, ops in enumerate(reads(s)):
                if k == 0 and queue:
                    self.put(S, [queue.pop(0)])
                S.extend(ops)
        for s in range(20):
            nxt = reads(s + PRE) if s + PRE < 20 else []
            S.wait(ta[s], rdtok[s])
            for nu in range(5):
                it = None
                if nu in ((1, 3) if s < self.o("g2two", 6) else (1,)) and queue:
                    it = queue.pop(0)
                    S.extend(it.pre)
                c = "0" if s == 0 else f"v[{ACC+4*nu}:{ACC+4*nu+3}]"
                S(f"v_mfma_f32_16x16x32_bf16 v[{ACC+4*nu}:{ACC+4*nu+3}], a[{WB(s,nu)}:{WB(s,nu)+3}], v[{AF+4*s}:{AF+4*s+3}], {c}")
                if it:
                    S.extend(it.post)
                for ops in nxt[2 * nu:2 * nu + 2]:
                    S.extend(ops)
        self.put(S, queue)
        S.wait_all(vm=False, ds=True)
        S.barrier()
        self.stamp(S, "g2mfma")
        wq = w3[0] + w3[1] + w3[2]
        self.w3late = w3[3] + ([] if early else w3[4])
        E = Stream()
        XFp = 40
        E.wait(t_mr)
        E(f"v_mul_f32 v{vMR}, v{vMR}, v{vMR+1}")
        E(f"v_sub_f32 v{vMR}, 0, v{vMR}")
        for p in range(10):
            E(f"v_lshlrev_b32 v{XFp+2*p}, 16, v{vXT+p}")
            E(f"v_and_b32 v{XFp+2*p+1}, s{sMASK}, v{vXT+p}")
        for p in range(10):
            E(f"v_pk_fma_f32 v[{ACC+2*p}:{ACC+2*p+1}], v[{XFp+2*p}:{XFp+2*p+1}], v[{vMR}:{vMR+1}], v[{ACC+2*p}:{ACC+2*p+1}] op_sel:[0,1,0] op_sel_hi:[1,1,1]")
        for p in range(10):
            E(f"v_pk_add_f32 v[{ACC+2*p}:{ACC+2*p+1}], v[{ACC+2*p}:{ACC+2*p+1}], v[{vMR}:{vMR+1}] op_sel_hi:[1,0]")
        E(f"s_add_u32 s{sC}, s{sF}, {WS_X1}")
        PK = 100
        for p in range(10):
            E(f"v_cvt_pk_bf16_f32 v{PK+p}, v{ACC+2*p}, v{ACC+2*p+1}")
        st = []
        st.append(E.vm(f"buffer_store_dwordx4 v[{PK}:{PK+3}], v{vL16}, {srd(S_WS)}, s{sC} offen sc1"))
        st.append(E.vm(f"buffer_store_dwordx4 v[{PK+4}:{PK+7}], v{vL16}, {srd(S_WS)}, s{sC} offen offset:1024 sc1"))
        st.append(E.vm(f"buffer_store_dwordx2 v[{PK+8}:{PK+9}], v{vL8}, {srd(S_WS)}, s{sC} offen sc1"))
        for r in range(4):
            E(f"v_mov_b32 v{80+r}, 0")
        for p in range(10):
            E(f"v_dot2c_f32_bf16 v{80+(p&1)}, s{sONES}, v{PK+p}")
            E(f"v_dot2c_f32_bf16 v{82+(p&1)}, v{PK+p}, v{PK+p}")
        E(f"s_add_u32 s{sC}, s{sH}, {WS_PS - 2048}")
        E("v_add_f32 v80, v80, v81\n v_add_f32 v81, v82, v83")
        self.qreduce2(E, 80, 81, 82)
        E("s_mov_b64 exec, 0xffff")
        st.append(E.vm(f"buffer_store_dwordx2 v[80:81], v{vL8}, {srd(S_WS)}, s{sC} offen sc1"))
        E("s_mov_b64 exec, -1")
        E, wq = sprinkle(E, wq, self.o("s_e2", 0), self.o("p_e2", 130))
        S.extend(E)
        self.stamp(S, "g2epi")

        def send_f2(T):
            T.wait(st)
            T(f"s_lshl_b32 s{sC}, s{sCB}, 2")
            T(f"s_add_u32 s{sC}, s{sC}, s{sU}")
            T(f"s_add_u32 s{sC}, s{sC}, {FL_F2*128}")
            self.flag_store(T, sC)
            self.self_touch(T, WS_X1)
            T.wait(self.t_ppst)
            self.pp_flag(T)
            self.stamp(T, "f2sent")
        E = Stream()
        for p in range(10):
            E(f"v_mov_b32 v{vX1+p}, v{PK+p}")
        E(f"v_lshrrev_b32 v183, 2, v{vLANE}")
        E(f"v_mul_u32_u24 v183, 224, v183")
        E(f"v_and_b32 v184, 3, v{vLANE}")
        E(f"v_lshl_add_u32 v{vTR}, v184, 3, v183")
        E(f"v_add_u32 v{vTR+1}, 0x10000, v{vTR}")
        E(f"v_add_u32 v{vTR+2}, 0x20000, v{vTR}")
        E(f"v_add_u32 v173, s{sS3}, v{vTR}")
        E(f"v_add_u32 v174, 0x10000, v173")
        for r in range(4):
            E(f"v_mov_b32 v{176+r}, s{sONES}")
        E(f"v_and_b32 v{vFA}, 7, v{vLANE}")
        E(f"v_lshlrev_b32 v{vFA}, 2, v{vFA}")
        E(f"v_bfe_u32 v183, v{vLANE}, 3, 1")
        E(f"v_lshl_add_u32 v{vFA}, v183, 7, v{vFA}")
        E(f"s_lshl_b32 s{sA}, s{sPP}, 3")
        E(f"s_lshl_b32 s{sB}, s{sW}, 1")
        E(f"s_add_u32 s{sG}, s{sA}, s{sB}")
        E(f"s_lshl_b32 s{sX}, s{sG}, 7")
        E(f"s_add_u32 s{sX}, s{sX}, {FL_F2*128}")
        E, wq = sprinkle(E, wq, 0, self.o("p_kv0", 30))
        S.extend(E)
        n1 = self.o("w3n1", 4)
        self.put(S, wq[:n1])
        wq = wq[n1:]
        send_f2(S)
        self.put(S, [self.kvp_flags()])
        pit = self.vm_item(f"buffer_load_dword v{vFD}, v{vFA}, {srd(S_WS)}, s{sX} offen sc1")
        np_ = self.o("f2pollpos", 0)
        wq = wq[:len(wq)-np_] + [pit] + wq[len(wq)-np_:]
        CS = 172
        cst = {}

        def cs_reads(i):
            out = []
            for tau in range(7):
                for jh in range(2):
                    b = 28 * (i & 1) + 4 * tau + 2 * jh
                    T = Stream()
                    cst.setdefault(i, []).append(T.ds(f"ds_read_b64_tr_b16 a[{b}:{b+1}], {self.ldsaddr(173, 28672*i + 3584*jh + 32*tau)}"))
                    out.append(T.ops)
            return out

        def cs_mfma(i, nxt, items):
            S.wait(cst[i])
            for tau in range(7):
                b = 28 * (i & 1) + 4 * tau
                it = items.pop(0) if items and tau in (0, 2, 4, 6) else None
                if it:
                    S.extend(it.pre)
                c = "0" if i == 0 else f"a[{CS+4*tau}:{CS+4*tau+3}]"
                S(f"v_mfma_f32_16x16x32_bf16 a[{CS+4*tau}:{CS+4*tau+3}], a[{b}:{b+3}], v[176:179], {c}")
                if it:
                    S.extend(it.post)
                for ops in nxt[2 * tau:2 * tau + 2]:
                    S.extend(ops)

        issued = lambda i: not any(it.tok is self.t_w3[i][-1] for it in wq)
        while not issued(1):
            self.put(S, [wq.pop(0)])
        S.wait(self.t_w3[0])
        for ops in cs_reads(0):
            S.extend(ops)
        self.put(S, wq[:3])
        wq = wq[3:]
        S.wait(self.t_w3[1])
        cs_mfma(0, cs_reads(1), wq)
        self.put(S, wq)
        cs_mfma(1, [], [])
        self.poll_check(S, pit.tok, vFD, vFA, S_WS, f"s{sX}")
        self.stamp(S, "f2seen")

        def last(items):
            S.wait(self.t_w3[2])
            for ops in cs_reads(2):
                S.extend(ops)
            cs_mfma(2, [], items)
        self.colsum_last = last

    def kvp_flags(self):
        it = Item()
        T = it.post
        T.wait(self.t_kvst)
        T(f"s_lshl_b32 s{sC}, s{sCB}, 2")
        T(f"s_add_u32 s{sC}, s{sC}, s{sW}")
        T(f"s_lshl_b32 s{sC}, s{sC}, 7")
        T(f"s_lshl_b32 s{sD}, s{sRB}, 2")
        T(f"s_add_u32 s{sC}, s{sC}, s{sD}")
        T(f"s_add_u32 s{sC}, s{sC}, {FL_KV*128}")
        self.flag_store(T, sC)
        return it

    def w4_reg(self, phi):
        if phi < 64:
            return ("a", 4 * phi)
        if phi == 64:
            return ("v", 232)
        return ("v", 236 + 2 * (phi - 65))

    def w4_items(self, record=True):
        G = []
        tk = {}
        for phi in range(70):
            T = Stream()
            if phi == 0:
                T(f"s_lshl_b32 s{sW4}, s{sCB}, 2")
                T(f"s_add_u32 s{sW4}, s{sW4}, s{sW}")
                T(f"s_mul_i32 s{sW4}, s{sW4}, 71680")
                T(f"s_add_u32 s{sW4}, s{sW4}, {WS_W4P}")
            elif phi % 4 == 0:
                T(f"s_add_u32 s{sW4}, s{sW4}, 4096")
            k, r = self.w4_reg(phi)
            n = 4 if phi <= 64 else 2
            it = self.vm_item(f"buffer_load_dwordx{n} {k}[{r}:{r+n-1}], v{vL16}, {srd(S_WS)}, s{sW4} offen offset:{1024*(phi%4)} {self.ld}")
            it.pre.ops = T.ops
            tk[phi] = it.tok
            G.append(it)
        if record:
            self.t_w4 = tk
        return G

    def gemm3(self):
        S = self.S
        RING, NR, ACC, TMP = 40, 15, 184, 240
        CS = 172
        steps = self.ksteps()
        AR = lambda s, h: RING + 8 * (s % NR) + 4 * h
        AC = lambda h, tau: ACC + 28 * h + 4 * tau
        WB = lambda s, tau: 200 + 28 * (s & 1) + 4 * tau
        S(f"s_mul_i32 s{sB}, s{sG}, 20480")
        self.group_offsets(S, sB, WS_X1)
        ta, loads = {}, {}
        for s, st in enumerate(steps):
            i0 = self.a_items(AR(s, 0), sP0 + st[1], st)
            i1 = self.a_items(AR(s, 1), sS4, st, pre=f"s_add_u32 s{sS4}, s{sP0+st[1]}, 20480" if s % 5 == 0 else None)
            ta[s] = i1[-1].tok
            loads[s] = i0 + i1
        N0 = self.o("g3n0", 3)
        for s in range(N0):
            self.put(S, loads[s])
        S(f"s_mul_i32 s{sA}, s{sW}, 448")
        S(f"v_lshlrev_b32 v250, 4, v{vQ}")
        S(f"v_add_u32 v250, {L_CS3P}, v250")
        S(f"v_add_u32 v249, s{sA}, v250")
        more = loads[N0] + loads[N0 + 1]
        self.colsum_last(more)
        self.put(S, more)
        S(f"s_lshr_b32 s{sA}, s{sG}, 2")
        S(f"s_lshl_b32 s{sA}, s{sA}, 12")
        S(f"s_and_b32 s{sB}, s{sG}, 3")
        S(f"s_lshl_b32 s{sB}, s{sB}, 7")
        S(f"s_add_u32 s{sA}, s{sA}, s{sB}")
        S(f"s_add_u32 s{sS5}, s{sA}, {WS_PS}")
        S(f"v_lshlrev_b32 v248, 10, v{vQ}")
        S(f"v_lshl_add_u32 v248, v{vT}, 3, v248")
        S.wait_all(vm=False, ds=True)
        S.barrier()
        self.stamp(S, "w3bar")
        rdtok = {}

        def reads(s):
            out = []
            rows = steps[s][3]
            for tau in range(7):
                for jh in range(2):
                    T = Stream()
                    t = T.ds(f"ds_read_b64_tr_b16 a[{WB(s,tau)+2*jh}:{WB(s,tau)+2*jh+1}], {self.ldsaddr(vTR, L_W3 + 224*rows[jh] + 32*tau)}")
                    rdtok.setdefault((s, tau), []).append(t)
                    out.append(T.ops)
            return out

        for ops in reads(0):
            S.extend(ops)
        itf = self.vm_item(f"buffer_load_dword v{vFD}, v{vFA}, {srd(S_WS)}, s{sS0} offen sc1")
        T = itf.pre
        T(f"s_lshl_b32 s{sS0}, s{sCB}, 2")
        T(f"s_add_u32 s{sS0}, s{sS0}, s{sW}")
        T(f"s_lshl_b32 s{sS0}, s{sS0}, 7")
        T(f"s_add_u32 s{sS0}, s{sS0}, {FL_P*128}")
        T(f"v_min_u32 v{vFA}, 27, v{vLANE}")
        T(f"v_lshlrev_b32 v{vFA}, 2, v{vFA}")
        t_fc = itf.tok
        itk = self.vm_item(f"buffer_load_dword v{vFD}, v{vFA}, {srd(S_WS)}, s{sS0} offen sc1")
        T = itk.pre
        T(f"s_min_u32 s{sA}, s{sCI}, 19")
        T(f"s_lshl_b32 s{sA}, s{sA}, 2")
        T(f"s_add_u32 s{sA}, s{sA}, s{sW}")
        T(f"s_mul_i32 s{sB}, s{sA}, 3277")
        T(f"s_lshr_b32 s{sB}, s{sB}, 16")
        T(f"s_lshl_b32 s{sA}, s{sCB}, 2")
        T(f"s_add_u32 s{sB}, s{sB}, s{sA}")
        T(f"s_lshl_b32 s{sB}, s{sB}, 7")
        T(f"s_add_u32 s{sS0}, s{sB}, {FL_KV*128}")
        T(f"v_and_b32 v{vFA}, 31, v{vLANE}")
        T(f"v_lshlrev_b32 v{vFA}, 2, v{vFA}")
        its = Item()
        tps = [its.post.vm(f"buffer_load_dwordx2 v[{TMP+4*h+2*e}:{TMP+4*h+2*e+1}], v248, {srd(S_WS)}, s{sS5} offen offset:{512*e + 128*h} sc1")
               for h in range(2) for e in range(2)]
        w4 = self.w4_items()
        queue = []
        NW4 = self.o("g3w4", 10)
        late = list(self.w3late)
        for s in range(N0 + 2, 20):
            queue += [(it, s) for it in loads[s]]
            if late:
                queue.append((late.pop(0), None))
            if s == self.o("g3fc", 16):
                queue.append((itf, None))
            if s == self.o("ssmpos", 8):
                queue.append((self.ssm_touch(), None))
        assert not late
        queue += [(its, None)]
        nA = len(queue)
        queue += [(it, None) for it in w4[:NW4]]
        queue.insert(len(queue) - self.o("kvpollpos", 3), (itk, None))
        qi = 0
        tcs = {}
        checked = False
        places = self.o("g3pl", (1, 5, 10))
        CP = 56
        for s in range(20):
            if s in (11, 15):
                S.wait(self.t_w3[3 if s == 11 else 4])
                S.barrier()
            nxt = reads(s + 1) if s + 1 < 20 else []
            if qi + len(places) > nA and not checked:
                self.poll_check(S, t_fc, vFD, vFA, S_WS, f"s{sS0}")
                checked = True
            if self.o("fine", 0) == 3 and s in (1, 4, 8, 12, 16):
                self.stamp(S, f"g3s{s}")
            S.wait(ta[s], rdtok[s, 3])
            k = 0
            for tau in range(7):
                if tau == 4:
                    S.wait(rdtok[s, 6])
                for h in range(2):
                    it = None
                    if k in places and qi < len(queue) and (queue[qi][1] is None or queue[qi][1] < NR or queue[qi][1] - NR < s):
                        it = queue[qi][0]
                        qi += 1
                        S.extend(it.pre)
                    c = "0" if s == 0 else f"v[{AC(h,tau)}:{AC(h,tau)+3}]"
                    S(f"v_mfma_f32_16x16x32_bf16 v[{AC(h,tau)}:{AC(h,tau)+3}], a[{WB(s,tau)}:{WB(s,tau)+3}], v[{AR(s,h)}:{AR(s,h)+3}], {c}")
                    if it:
                        S.extend(it.post)
                    if k < len(nxt):
                        S.extend(nxt[k])
                    k += 1
            if s >= 12:
                lab = self.label("cs3")
                S(f"s_cmp_lg_u32 s{sW}, {(s + s // 16) % 4}")
                S(f"s_cbranch_scc1 {lab}")
                for tau in range(7):
                    S(f"v_mfma_f32_16x16x32_bf16 a[{CS+4*tau}:{CS+4*tau+3}], a[{WB(s,tau)}:{WB(s,tau)+3}], v[176:179], a[{CS+4*tau}:{CS+4*tau+3}]")
                S(f"{lab}:")
        while qi < len(queue):
            self.put(S, [queue[qi][0]])
            qi += 1
        assert checked
        self.w4i = NW4
        self.poll_check(S, itk.tok, vFD, vFA, S_WS, f"s{sS0}")
        S("s_mov_b32 exec_lo, 0x00010001")
        S("s_mov_b32 exec_hi, 0x00010001")
        for tau in range(7):
            S.ds(f"ds_write_b128 v249, a[{CS+4*tau}:{CS+4*tau+3}] offset:{64*tau}")
        S("s_mov_b64 exec, -1")
        S.wait_all(vm=False, ds=True)
        S.barrier()
        self.stamp(S, "g3mfma")
        for w in range(4):
            for tau in range(7):
                tcs[w, tau] = S.ds(f"ds_read_b128 v[{CP+28*w+4*tau}:{CP+28*w+4*tau+3}], v250 offset:{448*w + 64*tau}")
        conv_side = self.conv_items()
        E = Stream()
        E(f"s_lshl_b32 s{sA}, s{sG}, 4")
        E(f"s_add_u32 s{sA}, s{sA}, s{sJJ}")
        E(f"s_mul_i32 s{sX}, s{sA}, 3584")
        E(f"s_add_u32 s{sX}, s{sX}, {WS_H3}")
        E(f"s_add_u32 s{sY}, s{sX}, {16*3584}")
        E(f"s_mov_b32 s42, s{sX}")
        E.wait(tps)
        for h in range(2):
            a = TMP + 4 * h
            E(f"v_add_f32 v{a}, v{a}, v{a+2}")
            E(f"v_add_f32 v{a+1}, v{a+1}, v{a+3}")
            self.qreduce2(E, a, a + 1, a + 2)
            E(f"v_mul_f32 v{a+2}, s{sINV}, v{a}")
            E(f"v_mul_f32 v{a+1}, s{sINV}, v{a+1}")
            E(f"v_fma_f32 v{a+1}, -v{a+2}, v{a+2}, v{a+1}")
            E(f"v_max_f32 v{a+1}, 0, v{a+1}")
            E(f"v_add_f32 v{a+3}, s{sEPS}, v{a+1}")
            E(f"v_rsq_f32 v{248+h}, v{a+3}")
            E(f"v_sub_f32 v{a+2}, 0, v{a+2}")
            E(f"v_mul_f32 v{a+3}, v{a+3}, v{248+h}")
            self.gelu_consts(E, 248 + h, a)
        E.wait([tcs[w, tau] for w in range(2) for tau in range(7)])
        for p in range(14):
            E(f"v_pk_add_f32 v[{CP+2*p}:{CP+2*p+1}], v[{CP+2*p}:{CP+2*p+1}], v[{CP+28+2*p}:{CP+28+2*p+1}]")
        E.wait(list(tcs.values()))
        for p in range(14):
            E(f"v_pk_add_f32 v[{CP+56+2*p}:{CP+56+2*p+1}], v[{CP+56+2*p}:{CP+56+2*p+1}], v[{CP+84+2*p}:{CP+84+2*p+1}]")
        for p in range(14):
            E(f"v_pk_add_f32 v[{CP+2*p}:{CP+2*p+1}], v[{CP+2*p}:{CP+2*p+1}], v[{CP+56+2*p}:{CP+56+2*p+1}]")
        st = []
        PK = 88
        for h in range(2):
            KA, KB = TMP + 4 * h, TMP + 4 * h + 2
            for p in range(14):
                a = AC(h, 0) + 2 * p
                E(f"v_pk_fma_f32 v[{a}:{a+1}], v[{CP+2*p}:{CP+2*p+1}], v[{KB}:{KB+1}], v[{a}:{a+1}] op_sel_hi:[1,0,1]")
            pk = PK + 16 * h
            if self.o("fine", 0) == 3:
                self.stamp(E, f"e3h{h}")
            for f in range(3):
                self.gelu_pairs(E, [(AC(h, 0) + 8 * f + 2 * p, pk + 4 * f + p) for p in range(4)], 40, KA, KB)
                st.append(E.vm(f"buffer_store_dwordx4 v[{pk+4*f}:{pk+4*f+3}], v{vL16}, {srd(S_WS)}, s{sX+h} offen offset:{1024*f} sc1"))
            self.gelu_pairs(E, [(AC(h, 0) + 24 + 2 * p, pk + 12 + p) for p in range(2)], 40, KA, KB)
            st.append(E.vm(f"buffer_store_dwordx2 v[{pk+12}:{pk+13}], v{vL8}, {srd(S_WS)}, s{sX+h} offen offset:1024 sc1"))
        E, rest = sprinkle(E, conv_side, 0, self.o("p_e3", 170))
        assert not rest
        S.extend(E)
        self.t_h3st = st
        self.w4all = w4
        self.stamp(S, "g3epi")

    def conv_items(self):
        G = []
        self.t_cv = []
        CV = 168
        it = Item()
        T = it.pre
        T(f"s_min_u32 s{sS0}, s{sCI}, 19")
        T(f"s_lshl_b32 s{sS0}, s{sS0}, 2")
        T(f"s_add_u32 s{sS0}, s{sS0}, s{sW}")
        T(f"s_mul_i32 s{sS1}, s{sCB}, 80")
        T(f"s_add_u32 s{sS1}, s{sS0}, s{sS1}")
        T(f"s_lshl_b32 s92, s{sS1}, 12")
        T(f"s_lshl_b32 s93, s{sS1}, 1")
        T(f"s_add_u32 s94, s92, {WS_KVR}")
        T(f"s_mul_i32 s95, s{sW}, {CONV_W}")
        self.mksrd(T, S_M, P_SSMK, 2621440)
        self.mksrd(T, S_K, P_SSMD, 1280)
        T(f"v_add_u32 v{CV}, 4, v{vL16}")
        T(f"v_add_u32 v{CV+1}, 2, v{vL16}")
        T(f"v_mov_b32 v{CV+2}, 0x7ffffff0")
        G.append(it)

        def guarded(fn, it=None):
            it = it or Item()
            T = it.post
            lab = self.label("ncv")
            T(f"s_cmp_ge_u32 s{sCI}, 20")
            T(f"s_cbranch_scc1 {lab}")
            T.optbeg()
            fn(T)
            T.optend()
            T(f"{lab}:")
            return it

        def small(T):
            self.t_cv.append(T.vm(f"buffer_load_dword v{CV+4}, v{vZERO}, {srd(S_M)}, s92 offen"))
            self.t_cv.append(T.vm(f"buffer_load_ushort v{CV+5}, v{vZERO}, {srd(S_K)}, s93 offen"))
        guarded(small, it)

        def pads(T):
            for dst, mask in ((C_H0, "s_mov_b64 exec, 15"), (C_H2, None), (C_KVA + 4096, "s_mov_b32 exec_lo, -1"), (C_KVB + 4096, None)):
                T(f"s_add_u32 m0, s95, {dst}")
                T(mask or "s_nop 0")
                self.t_cv.append(T.vm(f"buffer_load_dwordx4 v{CV+2}, {srd(S_K)}, 0 offen lds"))
            T("s_mov_b64 exec, -1")
        G.append(guarded(pads))
        for i in range(0, 4, 2):
            for (va, sr, so, dst, fl) in ((vL16, S_M, 92, C_H0 + 64, ""), (CV, S_M, 92, C_H2 + 64, ""),
                                          (vL16, S_WS, 94, C_KVA, "sc1"), (CV + 1, S_WS, 94, C_KVB, "sc1")):
                def f(T, va=va, sr=sr, so=so, dst=dst, fl=fl, i=i):
                    for e in range(2):
                        self.t_cv.append(T.vm(f"buffer_load_dwordx4 v{va}, {srd(sr)}, s{so} offen offset:{1024*(i+e)} {fl} lds"))
                it = Item()
                it.pre(f"s_add_u32 m0, s95, {dst}")
                G.append(guarded(f, it))
        return G

    def a4_setup(self, S):
        for k in range(4):
            S(f"s_add_u32 s{sA}, s{sW}, {k}")
            S(f"s_and_b32 s{sA}, s{sA}, 3")
            S(f"s_lshl_b32 s{sB}, s{sRB}, 2")
            S(f"s_add_u32 s{sA}, s{sA}, s{sB}")
            S(f"s_lshl_b32 s{sA}, s{sA}, 2")
            S(f"s_add_u32 s{sA}, s{sA}, s{sW}")
            S(f"s_mul_i32 s{sA}, s{sA}, {4*3584}")
            S(f"s_add_u32 s{36+k}, s{sA}, {WS_H3}")

    def g4_order(self):
        TAIL = 3
        order = [(s, k) for s in range(14 - TAIL) for k in range(4)]
        for k in (1, 2, 3, 0):
            order += [(s, k) for s in range(14 - TAIL, 14)]
        NS = 28
        slot = {sk: (i + 10) % NS for i, sk in enumerate(order)}
        return TAIL, order, NS, slot

    def a4_item(self, s, k, slot):
        r = 120 + 4 * slot[s, k]
        if s < 12:
            b, f = divmod(s, 3)
            return self.vm_item(f"buffer_load_dwordx4 v[{r}:{r+3}], v{vL16}, {srd(S_WS)}, s{sS0} offen offset:{1024*f} {self.ld}",
                                pre=f"s_add_u32 s{sS0}, s{36+k}, {3584*b}")
        if s == 12:
            it = self.vm_item(f"buffer_load_dwordx2 v[{r}:{r+1}], v{vL8}, {srd(S_WS)}, s{36+k} offen offset:1024 {self.ld}",
                              pre=f"s_add_u32 s{sS0}, s{36+k}, 3584")
            it.tok = it.post.vm(f"buffer_load_dwordx2 v[{r+2}:{r+3}], v{vL8}, {srd(S_WS)}, s{sS0} offen offset:1024 {self.ld}")
            return it
        return self.vm_item(f"buffer_load_dwordx2 v[{r}:{r+1}], v{vL8}, {srd(S_WS)}, s{sS0} offen offset:1024 {self.ld}",
                            pre=f"s_add_u32 s{sS0}, s{36+k}, {2*3584}")

    def signal_f3(self, S):
        S.wait(self.t_h3st)
        self.flag_store(S, sY)
        if self.o("selft", 0):
            S(f"v_and_b32 v252, 31, v{vLANE}")
            S(f"v_lshlrev_b32 v252, 7, v252")
            S(f"v_lshrrev_b32 v253, 5, v{vLANE}")
            S(f"v_mul_u32_u24 v253, {16*3584}, v253")
            S(f"v_add_u32 v252, v252, v253")
            S("s_mov_b32 exec_lo, 0x0fffffff")
            S("s_mov_b32 exec_hi, 0x0fffffff")
            S.vm(f"buffer_load_dword v253, v252, {srd(S_WS)}, s42 offen sc1")
            S("s_mov_b64 exec, -1")

    def conv(self):
        S = self.S
        CV = 168
        ACC, KVB, HB = 40, 72, 136
        TAIL, order, NS, slot = self.g4_order()
        NPRE = self.o("a4pre", 18)
        U = Stream()
        U(f"s_lshr_b32 s{sA}, s{sW}, 1")
        U(f"s_lshl_b32 s{sB}, s{sPP}, 1")
        U(f"s_add_u32 s{sA}, s{sA}, s{sB}")
        U(f"s_lshl_b32 s{sA}, s{sA}, 2")
        U(f"s_lshr_b32 s{sB}, s{sJJ}, 2")
        U(f"s_add_u32 s{sA}, s{sA}, s{sB}")
        U(f"s_lshl_b32 s{sA}, s{sA}, 7")
        U(f"s_and_b32 s{sB}, s{sJJ}, 3")
        U(f"s_lshl_b32 s{sB}, s{sB}, 1")
        U(f"s_and_b32 s{sC}, s{sW}, 1")
        U(f"s_add_u32 s{sB}, s{sB}, s{sC}")
        U(f"s_lshl_b32 s{sB}, s{sB}, 2")
        U(f"s_add_u32 s{sA}, s{sA}, s{sB}")
        U(f"s_add_u32 s{sY}, s{sA}, {FL_F3*128}")
        U(f"s_add_u32 s{sX}, s{sU}, {FL_F3*128}")
        U(f"v_and_b32 v{vFA}, 7, v{vLANE}")
        U(f"v_lshlrev_b32 v{vFA}, 2, v{vFA}")
        self.a4_setup(U)
        lb, lj = self.label("noconv"), self.label("join")
        S(f"s_cmp_ge_u32 s{sCI}, 20")
        S(f"s_cbranch_scc1 {lb}")
        prefix = list(S.ops)
        B = Stream()
        B(f"{lb}:")
        B.extend([Op(o.text, "i") for o in U.ops])
        W4C = self.o("w4c", 56)
        w4b = self.w4_items(record=False)[self.w4i:W4C]
        self.put(B, w4b[:8])
        self.signal_f3(B)
        self.put(B, w4b[8:-6])
        tp = self.poll_load(B, vFD, vFA, S_WS, f"s{sX}")
        self.put(B, w4b[-6:])
        self.poll_check(B, tp, vFD, vFA, S_WS, f"s{sX}")
        self.stamp(B, "f3seen")
        self.put(B, [self.a4_item(s, k, slot) for (s, k) in order[:NPRE]])
        marker = Op("; path B", "raw", cost=0)
        resolved = resolve_waits(prefix + [marker] + B.ops)
        idx = [i for i, o in enumerate(resolved) if o is marker][0]
        Bops = [Op(o.text, "resolved") for o in resolved[idx + 1:]]
        S.save_done()
        A1, A2, A3 = 152, 153, 154
        S.wait(self.t_cv)
        S(f"v_lshlrev_b32 v{CV+6}, 16, v{CV+4}")
        S(f"v_lshlrev_b32 v{CV+5}, 16, v{CV+5}")
        S(f"v_add_f32 v{CV+6}, v{CV+6}, v{CV+5}")
        S(f"v_and_b32 v{CV+7}, s{sMASK}, v{CV+4}")
        S(f"v_cvt_pk_bf16_f32 v{CV+6}, v{CV+6}, v{CV+7}")
        S(f"v_mov_b32 v{A1}, s95")
        S("s_mov_b64 exec, 1")
        S.ds(f"ds_write_b32 v{A1}, v{CV+6} offset:{C_H0 + 64}")
        S.ds(f"ds_write_b32 v{A1}, v{CV+6} offset:{C_H2 + 60}")
        S.ds(f"ds_write_b16 v{A1}, v{vZERO} offset:{C_KVB + 4094}")
        S("s_mov_b64 exec, -1")
        self.stamp(S, "cvready")
        KV = lambda u, b: KVB + 32 * (u & 1) + 4 * b
        HH = lambda pi, e: HB + 8 * (pi & 1) + 4 * e
        tkv, th = {}, {}

        def kvreads(u):
            out = []
            for b in range(8):
                T = Stream()
                tkv[u, b] = T.ds(f"ds_read_b128 v[{KV(u,b)}:{KV(u,b)+3}], v{vKV} offset:{3584 - 512*b + 64*u}")
                out.append(T.ops)
            return out

        def hreads(pi):
            u, pr = divmod(pi, 4)
            out = []
            for e, a in ((0, pr), (1, 7 - pr)):
                for jh in range(2):
                    T = Stream()
                    th.setdefault(pi, []).append(
                        T.ds(f"ds_read_b64 v[{HH(pi,e)+2*jh}:{HH(pi,e)+2*jh+1}], v{vH} offset:{64*u + 512*a + 8*jh}"))
                    out.append(T.ops)
            return out

        for ops in kvreads(0) + hreads(0):
            S.extend(ops)
        w4a = self.w4all[self.w4i:W4C]
        self.w4rest = self.w4all[W4C:]
        self.t_a4 = {}
        a4 = []
        for (s, k) in order[:NPRE]:
            it = self.a4_item(s, k, slot)
            self.t_a4[s, k] = it.tok
            a4.append(it)
        P_SIG = self.o("cv_sig", 5)
        nw = len(w4a)
        P_POLL = self.o("cv_poll", max(14, (nw - 4 + 1) // 2))
        P_CHK = max(P_POLL + 2, (nw + 1) // 2)
        queue = list(w4a)
        setup = list(U.ops)
        first = set()
        tp = None
        for u in range(8):
            kvn = kvreads(u + 1) if u < 7 else []
            for pr in range(4):
                pi = 4 * u + pr
                if pi == P_SIG:
                    assert len(U.ops) - len(setup) >= 14
                    self.signal_f3(S)
                if pi == P_POLL:
                    assert not setup
                    tp = self.poll_load(S, vFD, vFA, S_WS, f"s{sX}")
                if pi == P_CHK:
                    assert not queue
                    self.poll_check(S, tp, vFD, vFA, S_WS, f"s{sX}")
                    self.stamp(S, "f3seen")
                    queue = a4
                side = (hreads(pi + 1) if pi < 31 else []) + kvn[2 * pr:2 * pr + 2]
                S.wait(th[pi])
                k = 0
                for e, a in ((0, pr), (1, 7 - pr)):
                    for b in range(8 - a):
                        m = a + b
                        if pr == 0 and e == 0 and b == 6:
                            S.wait(tkv[u, 7])
                        it = None
                        if k in (6, 8) + ((7,) if pi >= P_CHK else ()) and queue:
                            it = queue.pop(0)
                            S.extend(it.pre)
                        c = f"v[{ACC+4*m}:{ACC+4*m+3}]" if m in first else "0"
                        first.add(m)
                        S(f"v_mfma_f32_16x16x32_bf16 v[{ACC+4*m}:{ACC+4*m+3}], v[{KV(u,b)}:{KV(u,b)+3}], v[{HH(pi,e)}:{HH(pi,e)+3}], {c}")
                        if it:
                            S.extend(it.post)
                        elif setup:
                            n = 1 if k < len(side) else 2
                            S.extend(setup[:n])
                            setup = setup[n:]
                        if k < len(side):
                            S.extend(side[k])
                        k += 1
        self.put(S, queue)
        self.stamp(S, "cvmfma")
        S("s_mov_b32 m0, s95")
        for m in range(8):
            for dw in range(2):
                S(f"v_cvt_pk_bf16_f32 v{KVB+2*m+dw}, v{ACC+4*m+2*dw}, v{ACC+4*m+2*dw+1}")
        for r in range(16):
            S.ds(f"ds_write_addtid_b32 v{KVB+r} offset:{256*r}")
        S(f"v_add_u32 v{A1}, s95, v{vL16}")
        rr = [S.ds(f"ds_read_b128 v[{KVB+16+4*k}:{KVB+19+4*k}], v{A1} offset:{1024*k}") for k in range(4)]
        S(f"v_lshrrev_b32 v{A2}, 5, v{vLANE}")
        S(f"v_lshlrev_b32 v{A2}, 9, v{A2}")
        S(f"v_bfe_u32 v{A3}, v{vLANE}, 2, 2")
        S(f"v_lshl_add_u32 v{A2}, v{A3}, 7, v{A2}")
        S(f"v_bfe_u32 v{A3}, v{vLANE}, 4, 1")
        S(f"v_lshl_add_u32 v{A2}, v{A3}, 6, v{A2}")
        S(f"v_and_b32 v{A3}, 3, v{vLANE}")
        S(f"v_lshl_add_u32 v{A2}, v{A3}, 4, v{A2}")
        S(f"s_add_u32 s94, s92, {WS_YT}")
        S.optbeg()
        self.t_yst = []
        for k in range(4):
            S.wait(rr[k])
            self.t_yst.append(S.vm(f"buffer_store_dwordx4 v[{KVB+16+4*k}:{KVB+19+4*k}], v{A2}, {srd(S_WS)}, s94 offen offset:{1024*k} sc1"))
        S.optend()
        S.wait_all(vm=False, ds=True)
        self.stamp(S, "cvdone")
        S(f"s_branch {lj}")
        S.extend(Bops)
        S(f"{lj}:")
        S.restore_done()
        S.wait_all(vm=False, ds=True)

    def gemm4(self):
        S = self.S
        ACC, RING = 40, 120
        TAIL, order, NS, slot = self.g4_order()
        NPRE = self.o("a4pre", 18)
        AC = lambda k, nu: ACC + 20 * k + 4 * nu
        AR = lambda s, k: RING + 4 * slot[s, k]
        ta = self.t_a4
        li = NPRE
        P = Stream()
        P(f"s_mul_i32 s{sB}, s{sW}, 15360")
        P(f"s_add_u32 s{sB}, s{sB}, {L_RB}")
        P(f"v_add_u32 v247, s{sB}, v{vL16}")
        for k in range(1, 4):
            P(f"s_add_u32 s{sA}, s{sW}, {k}")
            P(f"s_and_b32 s{sA}, s{sA}, 3")
            P(f"s_mul_i32 s{sA}, s{sA}, 15360")
            P(f"s_add_u32 s{sA}, s{sA}, {L_RB + 5120*(k-1)}")
            P(f"v_add_u32 v{247+k}, s{sA}, v{vL16}")
        P(f"v_min_u32 v{vFA}, 19, v{vLANE}")
        P(f"v_lshlrev_b32 v{vFA}, 2, v{vFA}")
        P(f"s_lshl_b32 s{sX}, s{sCB}, 2")
        P(f"s_add_u32 s{sX}, s{sX}, s{sW}")
        P(f"s_lshl_b32 s{sX}, s{sX}, 7")
        P(f"s_add_u32 s{sX}, s{sX}, {FL_Y*128}")
        P(f"v_lshrrev_b32 v251, 3, v{vLANE}")
        P(f"v_and_b32 v252, 7, v{vLANE}")
        P(f"v_lshlrev_b32 v252, 4, v252")
        P(f"v_lshl_add_u32 v251, v251, 12, v252")
        P(f"s_mul_i32 s{sY}, s{sCB}, 80")
        P(f"s_mul_i32 s{sB}, s{sW}, 20")
        P(f"s_add_u32 s{sY}, s{sY}, s{sB}")
        P(f"s_lshl_b32 s{sY}, s{sY}, 12")
        P(f"s_lshl_b32 s{sB}, s{sRB}, 7")
        P(f"s_add_u32 s{sY}, s{sY}, s{sB}")
        P(f"s_add_u32 s{sY}, s{sY}, {WS_YT}")
        P(f"s_mul_i32 s{sS4}, s{sW}, 2560")
        P(f"s_lshl_b32 s{sA}, s{sCI}, 2")
        P(f"s_add_u32 s{sA}, s{sA}, s{sW}")
        P(f"s_mul_i32 s{sB}, s{sA}, 3277")
        P(f"s_lshr_b32 s{sB}, s{sB}, 16")
        P(f"s_mul_i32 s{sC}, s{sB}, 20")
        P(f"s_sub_u32 s{sA}, s{sA}, s{sC}")
        P(f"s_lshl_b32 s{sA}, s{sA}, 2")
        P(f"s_lshl_b32 s{sC}, s{sCB}, 2")
        P(f"s_add_u32 s{sB}, s{sB}, s{sC}")
        P(f"s_lshl_b32 s{sB}, s{sB}, 7")
        P(f"s_add_u32 s{sA}, s{sA}, s{sB}")
        P(f"s_add_u32 s{sS3}, s{sA}, {FL_Y*128}")
        P(f"v_lshrrev_b32 v246, 2, v{vLANE}")
        P(f"v_lshlrev_b32 v246, 7, v246")
        P(f"v_and_b32 v252, 3, v{vLANE}")
        P(f"v_lshl_add_u32 v246, v252, 3, v246")
        P(f"s_lshl_b32 s{sA}, s{sW}, 5")
        P(f"s_add_u32 s{sA}, s{sA}, {L_YT}")
        P(f"v_add_u32 v246, s{sA}, v246")
        setup = P.ops
        XU, U, X1U, Y = 160, 180, 200, vXT
        Q1 = Stream()
        for p in range(10):
            Q1(f"v_lshlrev_b32 v{XU+2*p}, 16, v{vXT+p}")
            Q1(f"v_and_b32 v{XU+2*p+1}, s{sMASK}, v{vXT+p}")
        Q2 = Stream()
        for p in range(20):
            Q2(f"v_fma_f32 v{U+p}, v{XU+p}, v{vMR+1}, v{vMR}")
        Q3 = Stream()
        for p in range(10):
            Q3(f"v_lshlrev_b32 v{X1U+2*p}, 16, v{vX1+p}")
            Q3(f"v_and_b32 v{X1U+2*p+1}, s{sMASK}, v{vX1+p}")
        Q4 = Stream()
        for p in range(10):
            Q4(f"v_lshlrev_b32 v{vX1}, 16, v{Y+p}")
            Q4(f"v_and_b32 v{vX1+1}, s{sMASK}, v{Y+p}")
            Q4(f"v_mul_f32 v{U+2*p}, v{U+2*p}, v{vX1}")
            Q4(f"v_mul_f32 v{U+2*p+1}, v{U+2*p+1}, v{vX1+1}")
        shadow = []
        first = set()
        t_fy = None
        t_y = []
        wr = []
        YS, FYI, FYC, YB = self.o("g4ys", 12), self.o("g4fyi", 33), self.o("g4fyc", 40), self.o("g4yb", 47)
        self.stamp(S, "g4start")
        for i, (s, k) in enumerate(order):
            if i == YS:
                ny = self.label("noy")
                S(f"s_cmp_ge_u32 s{sCI}, 20")
                S(f"s_cbranch_scc1 {ny}")
                S.optbeg()
                S.wait(self.t_yst)
                self.flag_store(S, sS3)
                S.optend()
                S(f"{ny}:")
            if i == FYI:
                t_fy = self.poll_load(S, 253, vFA, S_WS, f"s{sX}")
            if i == FYC:
                self.poll_check(S, t_fy, 253, vFA, S_WS, f"s{sX}")
                for j in range(3):
                    it = self.dma_item(251, S_WS, f"s{sY}", sS4, L_YT + 1024 * j, flags="sc1", mask="s_mov_b32 exec_hi, 0" if j == 2 else None,
                                       pre=f"s_add_u32 s{sY}, s{sY}, {8*4096}" if j else None)
                    t_y.append(it.tok)
                    self.put(S, [it])
            if i == 33:
                shadow += Q1.ops
            if i == 38:
                shadow += Q2.ops
            if i == 43:
                shadow += Q3.ops
            if i == YB:
                S.wait(t_y)
                S.barrier()
                ty = [S.ds(f"ds_read_b64_tr_b16 v[{Y+2*tau}:{Y+2*tau+1}], v246 offset:{2048*tau}") for tau in range(5)]
            if i == YB + 2:
                W_ = Stream()
                W_.wait(ty)
                shadow += W_.ops + Q4.ops
            if self.o("fine", 0) == 4 and i in (4, 12, 20, 30, 40, 48):
                self.stamp(S, f"g4p{i}")
            S.wait(ta[s, k], self.t_w4[5 * s + 4])
            for nu in range(5):
                phi = 5 * s + nu
                kk, r = self.w4_reg(phi)
                it = None
                if nu == 1 and li < len(order) and li - i <= NS - 1:
                    it = self.a4_item(*order[li], slot)
                    ta[order[li]] = it.tok
                    li += 1
                    S.extend(it.pre)
                elif nu == 3 and self.w4rest and i % self.o("w4every", 2) == 0:
                    it = self.w4rest.pop(0)
                    S.extend(it.pre)
                c = f"v[{AC(k,nu)}:{AC(k,nu)+3}]" if (k, nu) in first else "0"
                first.add((k, nu))
                if s < 13:
                    S(f"v_mfma_f32_16x16x32_bf16 v[{AC(k,nu)}:{AC(k,nu)+3}], {kk}[{r}:{r+3}], v[{AR(s,k)}:{AR(s,k)+3}], {c}")
                else:
                    S(f"v_mfma_f32_16x16x16_bf16 v[{AC(k,nu)}:{AC(k,nu)+3}], {kk}[{r}:{r+1}], v[{AR(s,k)}:{AR(s,k)+1}], {c}")
                if it:
                    S.extend(it.post)
                elif setup:
                    S.extend(setup[:2])
                    setup = setup[2:]
                elif wr and nu in (2, 4) and s >= 14 - TAIL:
                    S.extend(wr.pop(0))
                elif shadow:
                    n = 1 if nu == 4 else 2
                    if shadow[0].kind == "wait":
                        n += 1
                    S.extend(shadow[:n])
                    shadow = shadow[n:]
            if s == 13 and k != 0:
                for nu in range(5):
                    T = Stream()
                    T.ds(f"ds_write_b128 v{247+k}, v[{AC(k,nu)}:{AC(k,nu)+3}] offset:{1024*nu}")
                    wr.append(T.ops)
            if i == YS - 1:
                assert not setup
        assert li == len(order)
        for g in wr:
            S.extend(g)
        S.extend(shadow)
        self.stamp(S, "g4mfma")
        S.wait_all(vm=False, ds=True)
        S.barrier()
        rd = {}
        RD = 60
        for j in range(3):
            for nu in range(5):
                rd[j, nu] = S.ds(f"ds_read_b128 v[{RD+20*j+4*nu}:{RD+20*j+4*nu+3}], v247 offset:{5120*j + 1024*nu}")
        for p in range(10):
            S(f"v_pk_add_f32 v[{ACC+2*p}:{ACC+2*p+1}], v[{ACC+2*p}:{ACC+2*p+1}], v[{X1U+2*p}:{X1U+2*p+1}]")
        S(f"v_mul_u32_u24 v248, 160, v{vT}")
        S(f"v_lshl_add_u32 v248, v{vQ}, 3, v248")
        S(f"s_add_u32 s{sS4}, s{sS4}, {L_OUT}")
        S(f"v_add_u32 v248, s{sS4}, v248")
        S(f"v_add_u32 v249, s{sS4}, v{vL16}")
        S(f"s_mul_i32 s{sA}, s{sT0}, 1280")
        S(f"s_add_u32 s{sA}, s{sA}, s{sCB160}")
        for j in range(3):
            S.wait([rd[j, nu] for nu in range(5)])
            for p in range(10):
                S(f"v_pk_add_f32 v[{ACC+2*p}:{ACC+2*p+1}], v[{ACC+2*p}:{ACC+2*p+1}], v[{RD+20*j+2*p}:{RD+20*j+2*p+1}]")
        T0 = RING
        for p in range(10):
            S(f"v_pk_mul_f32 v[{T0+2*p}:{T0+2*p+1}], v[{ACC+2*p}:{ACC+2*p+1}], s[{sNL2E}:{sNL2E+1}] op_sel_hi:[1,0]")
        for p in range(20):
            S(f"v_exp_f32 v{T0+p}, v{T0+p}")
        for p in range(10):
            S(f"v_pk_mul_f32 v[{ACC+2*p}:{ACC+2*p+1}], v[{ACC+2*p}:{ACC+2*p+1}], v[{U+2*p}:{U+2*p+1}]")
            S(f"v_pk_add_f32 v[{T0+2*p}:{T0+2*p+1}], v[{T0+2*p}:{T0+2*p+1}], 1.0 op_sel_hi:[1,0]")
        for p in range(20):
            S(f"v_rcp_f32 v{T0+p}, v{T0+p}")
        for p in range(10):
            S(f"v_pk_fma_f32 v[{T0+2*p}:{T0+2*p+1}], v[{T0+2*p}:{T0+2*p+1}], v[{ACC+2*p}:{ACC+2*p+1}], v[{XU+2*p}:{XU+2*p+1}]")
        O = 100
        for tau in range(5):
            for e in range(2):
                p = 2 * tau + e
                S(f"v_cvt_pk_bf16_f32 v{O+p}, v{T0+2*p}, v{T0+2*p+1}")
            S.ds(f"ds_write_b64 v248, v[{O+2*tau}:{O+2*tau+1}] offset:{32*tau}")
        rr = []
        for j in range(3):
            if j == 2:
                S("s_mov_b32 exec_hi, 0")
            rr.append(S.ds(f"ds_read_b128 v[{140+4*j}:{143+4*j}], v249 offset:{1024*j}"))
        S("s_mov_b64 exec, -1")
        for j in range(3):
            S.wait(rr[j])
            if j == 2:
                S("s_mov_b32 exec_hi, 0")
            S.vm(f"buffer_store_dwordx4 v[{140+4*j}:{143+4*j}], v{vNAT+j}, {srd(S_OUT)}, s{sA} offen {self.o('outfl', '')}")
        S("s_mov_b64 exec, -1")
        self.stamp(S, "end")

    def finish(self):
        S = self.S
        if self.diag:
            S.wait_all()
            S("s_memrealtime s[90:91]")
            S.wait_all(vm=False, ds=True)
            S("v_writelane_b32 v39, s88, 30")
            S("v_writelane_b32 v39, s90, 31")
            S(f"s_lshl_b32 s{sA}, s{sRB}, 3")
            S(f"s_add_u32 s{sA}, s{sA}, s{sCB}")
            S(f"s_lshl_b32 s{sA}, s{sA}, 2")
            S(f"s_add_u32 s{sA}, s{sA}, s{sW}")
            S(f"s_lshl_b32 s{sA}, s{sA}, 7")
            S(f"s_add_u32 s{sA}, s{sA}, {WS_STAMP}")
            S(f"v_lshlrev_b32 v40, 2, v{vLANE}")
            S("s_mov_b32 exec_hi, 0")
            S.vm(f"buffer_store_dword v39, v40, {srd(S_WS)}, s{sA} offen")
            S.wait_all()
        if self.o("padat", None):
            S.wait_all()
            S("s_sub_u32 s90, s90, s88")
            S(f"s_mul_i32 s90, s90, {self.o('padk', 4)}")
            S("s_add_u32 s90, s90, 6000")
            S("L_pad:")
            S("s_memrealtime s[92:93]")
            S("s_waitcnt lgkmcnt(0)")
            S("s_sub_u32 s92, s92, s88")
            S("s_cmp_lt_u32 s92, s90")
            S("s_cbranch_scc1 L_pad")
        S("L_end:")
        S("s_endpgm")

    def build(self):
        phases = [self.prologue, self.gemm1, self.window1, self.gemm2, self.gemm3, self.conv, self.gemm4]
        for ph in phases:
            self.S.comment("==== " + ph.__name__)
            ph()
            if self.stop == ph.__name__:
                self.S.wait_all()
                break
        self.finish()
        ops = resolve_waits(self.S.ops)
        ops, npad = pad_hazards(ops)
        return ops, npad


HEADER = """; Fused persistent kernel: x + (LN(x) * H3conv(k,v)) * silu(S-MLP mixer(LN(x)))
; @launch grid=(256,1,1) block=(256,1,1) lds=163840
.amdgcn_target "amdgcn-amd-amdhsa--gfx950"
.text
.globl {name}
.p2align 8
.type {name},@function
{name}:
"""
FOOTER = """
.fill 4096, 4, 0xbf800000
s_endpgm
.section .rodata,"a"
.p2align 6
.amdhsa_kernel {name}
  .amdhsa_next_free_vgpr 512
  .amdhsa_next_free_sgpr 102
  .amdhsa_accum_offset 256
  .amdhsa_group_segment_fixed_size 0
  .amdhsa_kernarg_size 112
  .amdhsa_user_sgpr_count 2
  .amdhsa_user_sgpr_kernarg_segment_ptr 1
  .amdhsa_system_sgpr_workgroup_id_x 1
  .amdhsa_float_denorm_mode_32 3
.end_amdhsa_kernel
"""


def generate(**kw):
    g = Gen(**kw)
    ops, npad = g.build()
    txt = HEADER.format(name=NAME) + render(ops) + FOOTER.format(name=NAME)
    return txt, g, npad


if __name__ == "__main__":
    import argparse
    ap = argparse.ArgumentParser()
    ap.add_argument("-o", default="recurrent_scan__ssm_conv_h3__mixer_s_mlp__prompt.s")
    ap.add_argument("--diag", action="store_true")
    ap.add_argument("--stop", default=None)
    ap.add_argument("--opt", default="")
    a = ap.parse_args()
    txt, g, npad = generate(diag=a.diag, stop=a.stop, **eval("dict(%s)" % a.opt))
    open(a.o, "w").write(txt)
    print("written", a.o, "lines", txt.count("\n"), "nop pads", npad, "stamps", g.stamp_names)
```
